```python
import torch

def _softmax(x, axis=-1):
    return torch.softmax(x, dim=axis)
def _gelu(x):
    return torch.nn.functional.gelu(x, approximate="tanh")
def _silu(x):
    return torch.nn.functional.silu(x)
def _sigmoid(x):
    return torch.sigmoid(x)
def _layernorm(x, axis=-1, eps=1e-5):
    m = x.mean(dim=axis, keepdim=True)
    v = x.var(dim=axis, keepdim=True, unbiased=False)
    return (x - m) / torch.sqrt(v + eps)
def _scatter_add(tgt, idx, src, axis=0):
    return tgt.clone().index_add_(axis, idx, src)
def _segment_sum(src, seg, n):
    out = torch.zeros((n,) + src.shape[1:], dtype=src.dtype)
    return out.index_add_(0, seg, src)
def _pad(x, pw):
    flat = tuple(v for pair in reversed(pw) for v in pair)
    return torch.nn.functional.pad(x, flat)

kernel_name = 'parallel_sum__spectral_gfnet__dense_activation_silu__prompt'

def setup_inputs():

    _w = (lambda a: (lambda t: t.to(torch.bfloat16) if t.is_floating_point() else t)(torch.as_tensor(a)))
    def _A_setup():
        B, S, D = 1, 2048, 512
        Df = D // 2 + 1
        return {
            "x": _w((lambda *s: torch.randn(*s, dtype=torch.bfloat16) * 0.05)(B, S, D)),
            "w_r": _w((lambda *s: torch.randn(*s, dtype=torch.bfloat16) * 0.8)(S, Df) * 0.02),
            "w_i": _w((lambda *s: torch.randn(*s, dtype=torch.bfloat16) * 0.8)(S, Df) * 0.02),
        }
    _A_in = _A_setup()

    def _B_setup():
        B, S, D, F = 1, 2048, 512, 1376
        return {
            "x": _w((lambda *s: torch.randn(*s, dtype=torch.bfloat16) * 0.05)(B, S, D)),
            "w1": _w((lambda *s: torch.randn(*s, dtype=torch.bfloat16) * 0.8)(D, F) * (D ** -0.5)),
            "w2": _w((lambda *s: torch.randn(*s, dtype=torch.bfloat16) * 0.1)(F, D) * (F ** -0.5)),
        }
    _B_in = _B_setup()

    return {
        "A_x": _A_in["x"],
        "A_w_r": _A_in["w_r"],
        "A_w_i": _A_in["w_i"],
        "B_x": _B_in["x"],
        "B_w1": _B_in["w1"],
        "B_w2": _B_in["w2"],
    }

def reference(A_x, A_w_r, A_w_i, B_x, B_w1, B_w2):
    def _A_ref(x, w_r, w_i):
        B, S, D = x.shape
        X = (lambda x, axes=(-2,-1): torch.fft.rfft2(x.float(), dim=axes))(x, axes=(-2, -1))
        W = w_r + 1j * w_i
        X = X * W
        y = (lambda x, s, axes=(-2,-1): torch.fft.irfft2(x, s=s, dim=axes).to(torch.bfloat16))(X, (S, D), axes=(-2, -1))
        return y

    def _B_ref(x, w1, w2):
        h = torch.einsum("bsd,df->bsf", x, w1)
        h = _silu(h)
        out = torch.einsum("bsf,fd->bsd", h, w2)
        return out

    x = A_x
    xn = _layernorm(x, axis=-1)
    return x + _A_ref(xn, A_w_r, A_w_i) + _B_ref(xn, B_w1, B_w2)
```

```python
import re

TRANS = ("v_exp_f32", "v_log_f32", "v_rcp_f32", "v_rsq_f32", "v_sqrt_f32", "v_sin_f32", "v_cos_f32")

def _regs(tok):
    tok = tok.strip()
    neg = tok.lstrip("-")
    m = re.fullmatch(r"abs\((.*)\)", neg)
    if m: neg = m.group(1)
    neg = neg.strip("|")
    m = re.fullmatch(r"([vas])\[(\d+):(\d+)\]", neg)
    if m:
        return [f"{m.group(1)}{i}" for i in range(int(m.group(2)), int(m.group(3)) + 1)]
    m = re.fullmatch(r"([vas])(\d+)", neg)
    if m: return [neg]
    if neg == "vcc": return ["vcc"]
    if neg == "exec": return ["exec"]
    if neg == "m0": return ["m0"]
    return []

class Ins:
    __slots__ = ("text", "op", "kind", "wr", "rd", "passes", "srcc", "ab", "dpp", "states", "storedata")

def parse(text):
    t = text.split(";")[0].strip()
    parts = t.split(None, 1)
    op = parts[0]
    rest = parts[1] if len(parts) > 1 else ""
    ops = []; cur = ""; depth = 0
    for ch in rest:
        if ch == "[": depth += 1
        if ch == "]": depth -= 1
        if ch == "," and depth == 0:
            ops.append(cur); cur = ""
        else: cur += ch
    ops.append(cur)
    mods = ""
    if ops:
        last = ops[-1].strip().split(None, 1)
        if last:
            ops[-1] = last[0]
            mods = last[1] if len(last) > 1 else ""
    I = Ins(); I.text = text; I.op = op; I.wr = []; I.rd = []; I.passes = 0; I.srcc = []; I.ab = []
    I.dpp = ("_dpp" in op) or ("quad_perm" in mods) or ("row_" in mods); I.states = 1; I.storedata = []
    R = [_regs(o) for o in ops]
    base = op.replace("_e32", "").replace("_e64", "").replace("_dpp", "").replace("_sdwa", "")
    if op.startswith("v_mfma"):
        I.kind = "mfma"; I.wr = R[0]; I.ab = R[1] + R[2]; I.srcc = R[3]; I.rd = I.ab + I.srcc
        I.passes = 4 if "16x16x32" in op else (8 if "32x32x16" in op else (2 if "4x4x4" in op else 16))
    elif op.startswith("v_"):
        I.kind = "trans" if base in TRANS else "valu"
        if base.startswith("v_cmp"):
            I.wr = R[0]; I.rd = sum(R[1:], [])
        elif base.startswith("v_permlane") and "swap" in base:
            I.kind = "permlane"; I.wr = R[0] + R[1]; I.rd = R[0] + R[1]
        elif base in ("v_readlane_b32", "v_readfirstlane_b32"):
            I.kind = "readlane"; I.wr = R[0]; I.rd = sum(R[1:], [])
        elif base in ("v_add_co_u32", "v_sub_co_u32", "v_addc_co_u32", "v_subb_co_u32"):
            I.wr = R[0] + R[1]; I.rd = sum(R[2:], [])
        else:
            I.wr = R[0]; I.rd = sum(R[1:], [])
            if base in ("v_fmac_f32", "v_dot2c_f32_bf16", "v_pk_fmac_f16") or I.dpp:
                I.rd = I.rd + R[0]
            if base == "v_cndmask_b32" and len(ops) == 3: I.rd = I.rd + ["vcc"]
    elif op.startswith("ds_"):
        I.kind = "ds"
        if op.startswith("ds_read") or op.startswith("ds_bpermute") or op.startswith("ds_swizzle"):
            I.wr = R[0]; I.rd = sum(R[1:], [])
        else:
            I.rd = sum(R, [])
    elif op.startswith("buffer_") or op.startswith("global_"):
        I.kind = "vmem"
        islds = bool(re.search(r"\blds\b", mods)) or "_lds_" in op
        if "load" in op and not islds:
            I.wr = R[0]; I.rd = sum(R[1:], [])
        elif "atomic" in op and "sc0" in mods:
            I.wr = R[0]; I.rd = sum(R, [])
        else:
            I.rd = sum(R, [])
            if islds: I.rd = I.rd + ["m0"]; I.kind = "vmemlds"
            if "store" in op and ("x4" in op or "x3" in op):
                I.storedata = R[0] if op.startswith("buffer_") else R[1]
    elif op.startswith("s_"):
        I.kind = "salu"
        if op == "s_nop":
            I.states = int(ops[0]) + 1
        elif op.startswith("s_cmp") or op.startswith("s_cbranch") or op in ("s_waitcnt", "s_barrier", "s_branch", "s_endpgm", "s_setprio", "s_sleep"):
            I.rd = sum(R, [])
        else:
            I.wr = R[0]; I.rd = sum(R[1:], [])
    else:
        raise ValueError("unknown op " + text)
    return I

def need(p, c):
    n = 0
    pw = set(p.wr); cr = set(c.rd); cw = set(c.wr)
    pv = p.kind in ("valu", "trans", "permlane")
    cvalu = c.kind in ("valu", "trans", "permlane", "readlane")
    if pv:
        vw = {r for r in pw if r[0] in "va" and r != "vcc"}
        if c.kind == "mfma" and vw & cr: n = max(n, 2)
        if c.dpp and cvalu and vw & cr: n = max(n, 2)
        if c.kind == "readlane" and vw & cr: n = max(n, 1)
        if c.kind == "permlane" and vw & cr: n = max(n, 2)
        if p.kind == "trans" and cvalu and c.kind != "trans" and vw & cr: n = max(n, 1)
    if p.kind in ("valu", "readlane", "trans"):
        sw = {r for r in pw if r[0] == "s" or r == "vcc"}
        if sw & cr:
            if cvalu: n = max(n, 4 if c.kind == "readlane" else 2)
            if c.kind in ("vmem", "vmemlds"): n = max(n, 5)
            if c.kind == "salu": n = max(n, 1)
    if p.kind == "salu" and "m0" in pw and c.kind == "vmemlds": n = max(n, 1)
    if p.kind == "mfma":
        P = p.passes
        tabA = {2: 5, 4: 8, 8: 12, 16: 20}[P]
        if c.kind == "mfma":
            if pw & set(c.ab): n = max(n, tabA)
            if pw & set(c.srcc):
                if list(p.wr) == list(c.srcc) and c.passes == P: n = max(n, 2 if P == 2 else 0)
                else: n = max(n, {2: 4, 4: 6, 8: 10, 16: 18}[P])
            elif pw & cw: n = max(n, tabA)
        else:
            if pw & (cr | cw): n = max(n, tabA)
        if cvalu and set(p.srcc) & cw: n = max(n, {2: 1, 4: 3, 8: 7, 16: 15}[P])
    if p.storedata and set(p.storedata) & cw: n = max(n, 2)
    return n

class Asm:
    def __init__(self):
        self.lines = []
        self.hist = []
        self.vm = []
        self.lg = []
        self.nbytes = 0
        self.maxv = -1; self.maxa = -1; self.maxs = -1
    def raw(self, text):
        self.lines.append(text)
    def comment(self, t): self.lines.append("    ; " + t)
    def label(self, name):
        self.flush()
        self.lines.append(name + ":")
    def flush(self, n=None):
        req = 0; dist = 0
        for p in reversed(self.hist):
            worst = 0
            if p.kind == "mfma": worst = {2: 5, 4: 8, 8: 12, 16: 20}[p.passes]
            elif p.kind in ("valu", "trans", "permlane", "readlane"): worst = 5 if any(r[0] == "s" or r == "vcc" for r in p.wr) else 2
            elif p.storedata: worst = 2
            elif p.kind == "salu" and "m0" in p.wr: worst = 1
            req = max(req, worst - dist)
            dist += p.states
            if dist > 24: break
        if req > 0: self.nop(req)
        self.hist = []
    def nop(self, states):
        while states > 0:
            k = min(states, 16)
            self._put(parse(f"s_nop {k-1}"))
            states -= k
    def _put(self, I):
        self.lines.append("    " + I.text)
        self.hist.append(I)
        if len(self.hist) > 40: self.hist = self.hist[-40:]
        for r in I.wr + I.rd:
            if r[0] == "v" and r != "vcc": self.maxv = max(self.maxv, int(r[1:]))
            elif r[0] == "a": self.maxa = max(self.maxa, int(r[1:]))
            elif r[0] == "s": self.maxs = max(self.maxs, int(r[1:]))
    def __call__(self, text, tag=None):
        I = parse(text)
        req = 0; dist = 0
        for p in reversed(self.hist):
            req = max(req, need(p, I) - dist)
            dist += p.states
            if dist > 24: break
        if req > 0: self.nop(req)
        self._put(I)
        if I.kind in ("vmem", "vmemlds"): self.vm.append(tag)
        if I.kind == "ds": self.lg.append(tag)
        return I
    def wait_vm(self, *tags):
        idx = [i for i, t in enumerate(self.vm) if t in tags]
        if not idx: return
        last = max(idx)
        n = len(self.vm) - 1 - last
        assert n <= 63, "vmcnt overflow"
        self(f"s_waitcnt vmcnt({n})")
        self.vm = self.vm[last + 1:]
    def wait_lg(self, *tags):
        idx = [i for i, t in enumerate(self.lg) if t in tags]
        if not idx: return
        last = max(idx)
        n = len(self.lg) - 1 - last
        n = min(n, 15)
        self(f"s_waitcnt lgkmcnt({n})")
        self.lg = self.lg[len(self.lg) - n:] if n else []
    def wait_all(self, vm=True, lg=True):
        s = "s_waitcnt"
        if vm: s += " vmcnt(0)"; self.vm = []
        if lg: s += " lgkmcnt(0)"; self.lg = []
        self(s)
    def text(self): return "\n".join(self.lines) + "\n"

def kd(name, vgpr, sgpr, accum, extra=""):
    return f""".p2align 6
.amdhsa_kernel {name}
  .amdhsa_next_free_vgpr {vgpr}
  .amdhsa_next_free_sgpr {sgpr}
  .amdhsa_accum_offset {accum}
  .amdhsa_group_segment_fixed_size 0
  .amdhsa_kernarg_size 72
  .amdhsa_user_sgpr_count 2
  .amdhsa_user_sgpr_kernarg_segment_ptr 1
  .amdhsa_system_sgpr_workgroup_id_x 1
{extra}.end_amdhsa_kernel
"""
```

```python
from asmlib import *
from layout import *

def f32hex(x):
    import struct
    return "0x%08x" % struct.unpack("<I", struct.pack("<f", x))[0]

def srd(a, s, lo, hi, size):
    a(f"s_mov_b32 s{s}, s{lo}")
    a(f"s_mov_b32 s{s+1}, s{hi}")
    a(f"s_mov_b32 s{s+2}, {size}")
    a(f"s_mov_b32 s{s+3}, 0x20000")

def wave_reduce(a, t):
    a(f"v_add_f32_dpp v{t}, v{t}, v{t} quad_perm:[1,0,3,2] row_mask:0xf bank_mask:0xf")
    a(f"v_add_f32_dpp v{t}, v{t}, v{t} quad_perm:[2,3,0,1] row_mask:0xf bank_mask:0xf")
    a(f"v_add_f32_dpp v{t}, v{t}, v{t} row_half_mirror row_mask:0xf bank_mask:0xf")
    a(f"v_add_f32_dpp v{t}, v{t}, v{t} row_mirror row_mask:0xf bank_mask:0xf")
    a(f"v_add_f32_dpp v{t}, v{t}, v{t} row_bcast:15 row_mask:0xa bank_mask:0xf")
    a(f"v_add_f32_dpp v{t}, v{t}, v{t} row_bcast:31 row_mask:0xc bank_mask:0xf")

def P(r): return f"v[{r}:{r+1}]"
def Q(r): return f"v[{r}:{r+3}]"

def gen_k1(a, name, prefetch_bytes_expr=None):
    a.raw(f".globl {name}\n.p2align 8\n.type {name},@function\n{name}:")
    vL, vN, vG = 1, 2, 3
    vT = 4
    X = 12
    F = 16
    D = 24
    WR = 32; WI = 36
    T0 = 40; T1 = 44
    TWC = 48; TWS = 52
    RE = 56; IM = 60; SP0 = 64; SP1 = 68
    MK0 = 72; MK1 = 73
    OA = 74
    vWin = 78; vWout = 79; vTr = 80; vPf = 82
    AF = 84
    U0 = 88; U1 = 92
    B1 = 96; B0 = 100
    DR = 104; DI = 108
    C8 = 112; S8 = 120
    sW = 3; sMask = 28; sSign = 29
    a("s_cmp_gt_u32 s2, 256")
    a("s_cbranch_scc1 K1_END")
    a("s_load_dwordx4 s[4:7], s[0:1], 0")
    a("s_load_dwordx2 s[8:9], s[0:1], 16")
    a("s_load_dwordx2 s[10:11], s[0:1], 64")
    if prefetch_bytes_expr:
        a("s_getpc_b64 s[30:31]")
        a.raw("K1_PC:")
        a("s_lshr_b32 s32, s2, 3")
        a("s_and_b32 s32, s32, 7")
        a("s_lshl_b32 s32, s32, 11")
        a(f"v_lshl_add_u32 v{vT}, v0, 2, s32")
        a(f"v_cmp_gt_u32 vcc, {prefetch_bytes_expr}, v{vT}")
        a(f"v_mov_b32 v{vPf+1}, s31")
        a(f"v_cndmask_b32 v{vT}, 0, v{vT}, vcc")
        a(f"v_add_co_u32 v{vPf}, vcc, s30, v{vT}")
        a(f"v_addc_co_u32 v{vPf+1}, vcc, 0, v{vPf+1}, vcc")
        a(f"global_load_dword v{vTr+1}, v[{vPf}:{vPf+1}], off", tag="pf")
    a(f"v_lshrrev_b32 v{vT}, 6, v0")
    a(f"v_and_b32 v{vL}, 63, v0")
    a(f"v_readfirstlane_b32 s{sW}, v{vT}")
    a(f"v_and_b32 v{vN}, 15, v0")
    a(f"v_bfe_u32 v{vG}, v0, 4, 2")
    a(f"s_mov_b32 s{sMask}, 0xffff0000")
    a(f"s_mov_b32 s{sSign}, 0x80008000")
    a("s_mov_b32 s47, 0xbc003c00")
    a("s_and_b32 s33, s2, 31")
    a("s_lshr_b32 s34, s2, 5")
    a("s_lshl_b32 s35, s34, 8")
    a(f"s_lshl_b32 s36, s{sW}, 5")
    a("s_add_u32 s35, s35, s36")
    a("s_add_u32 s35, s35, s33")
    a("s_lshl_b32 s35, s35, 10")
    a(f"v_lshlrev_b32 v{vT+1}, 4, v{vL}")
    a(f"s_and_b32 s37, s{sW}, 3")
    a(f"s_lshr_b32 s38, s{sW}, 2")
    a("s_lshl_b32 s39, s38, 2")
    a("s_add_u32 s39, s39, s37")
    a(f"s_mul_i32 s40, s39, {4*64*514}")
    a("s_lshl_b32 s41, s37, 9")
    a("s_lshl_b32 s42, s38, 4")
    a("s_add_u32 s41, s41, s42")
    a(f"s_add_u32 s41, s41, {WT_OFF}")
    a("s_cmp_eq_u32 s2, 256")
    a("s_cbranch_scc1 K1_ALT")
    a("s_lshr_b32 s42, s2, 2")
    a("s_and_b32 s43, s2, 3")
    a("s_mul_i32 s44, s42, 514")
    a("s_lshl_b32 s45, s43, 7")
    a("s_add_u32 s44, s44, s45")
    a("s_add_u32 s40, s40, s44")
    a("s_lshl_b32 s44, s43, 19")
    a("s_add_u32 s41, s41, s44")
    a("s_lshr_b32 s44, s42, 4")
    a("s_lshl_b32 s44, s44, 11")
    a("s_add_u32 s41, s41, s44")
    a("s_and_b32 s44, s42, 15")
    a("s_lshl_b32 s44, s44, 5")
    a("s_add_u32 s41, s41, s44")
    a(f"v_lshlrev_b32 v{vWin}, 1, v{vL}")
    a(f"v_lshlrev_b32 v{vWout}, 13, v{vL}")
    a("s_branch K1_JOIN")
    a.label("K1_ALT")
    a(f"v_mul_u32_u24 v{vWin}, 514, v{vL}")
    a(f"v_add_u32 v{vWin}, 512, v{vWin}")
    a(f"v_lshlrev_b32 v{vWout}, 11, v{vG}")
    a(f"v_lshl_add_u32 v{vWout}, v{vN}, 5, v{vWout}")
    a(f"s_add_u32 s41, s41, {256*8192}")
    a("s_mov_b32 s35, 0")
    a.label("K1_JOIN")
    a("s_add_u32 s42, s40, 32896")
    a("s_add_u32 s43, s40, 65792")
    a("s_add_u32 s44, s40, 98688")
    a("s_waitcnt lgkmcnt(0)")
    srd(a, 12, 4, 5, 2097152)
    a(f"buffer_load_dwordx4 {Q(X)}, v{vT+1}, s[12:15], s35 offen", tag="x")
    srd(a, 16, 6, 7, 2048*514)
    srd(a, 20, 8, 9, 2048*514)
    srd(a, 24, 10, 11, WS_SIZE)
    for r, so in enumerate((40, 42, 43, 44)):
        a(f"buffer_load_ushort v{WR+r}, v{vWin}, s[16:19], s{so} offen", tag="w")
        a(f"buffer_load_ushort v{WI+r}, v{vWin}, s[20:23], s{so} offen", tag="w")
    a("s_cmp_eq_u32 s2, 256")
    a("s_cbranch_scc1 K1_WONLY")
    fn, fg, al, ph = vT+2, vT+3, vT+4, vT+5
    a(f"v_cvt_f32_u32 v{fn}, v{vN}")
    a(f"v_cvt_f32_u32 v{fg}, v{vG}")
    a(f"v_cmp_ne_u32 vcc, 0, v{vN}")
    a(f"v_mul_f32 v{al}, {f32hex(1/32)}, v{fn}")
    a(f"v_mul_f32 v{ph}, v{al}, v{fg}")
    a(f"v_mul_f32 v{ph}, {f32hex(8.0)}, v{ph}")
    a(f"v_cndmask_b32 v{MK1}, 0, -1, vcc")
    a(f"v_cndmask_b32 v{MK0}, -1, 0, vcc")
    for e in range(8):
        a(f"v_cos_f32 v{C8+e}, v{ph}")
        a(f"v_sin_f32 v{S8+e}, v{ph}")
        if e < 7: a(f"v_add_f32 v{ph}, v{ph}, v{al}")
    for j in range(4):
        a(f"v_cvt_pk_f16_f32 v{T0+j}, v{C8+2*j}, v{C8+2*j+1}")
        a(f"v_cvt_pk_f16_f32 v{T1+j}, -v{S8+2*j}, -v{S8+2*j+1}")
    for j in range(4):
        a(f"v_bfi_b32 v{T1+j}, v{MK1}, v{T1+j}, s47")
    a(f"v_mul_f32 v{al}, {f32hex(1/512)}, v{fn}")
    a(f"v_mul_f32 v{ph}, v{al}, v{fg}")
    a(f"v_mul_f32 v{ph}, 4.0, v{ph}")
    p2 = vT+6
    for r in range(4):
        a(f"v_cos_f32 v{TWC+r}, v{ph}")
        a(f"v_sin_f32 v{TWS+r}, v{ph}")
        a(f"v_mul_f32 v{p2}, {f32hex(32.0)}, v{ph}")
        if r < 3: a(f"v_add_f32 v{ph}, v{ph}, v{al}")
        a(f"v_cos_f32 v{C8+r}, v{p2}")
        a(f"v_sin_f32 v{S8+r}, v{p2}")
    a(f"v_cmp_gt_u32 vcc, 8, v{vN}")
    a(f"v_mul_f32 v{al}, {f32hex(1/16)}, v{fn}")
    a(f"v_subrev_f32 v{p2}, {f32hex(15/32)}, v{al}")
    a(f"v_cndmask_b32 v{al}, v{p2}, v{al}, vcc")
    lo, hi, sg, ng = vT+7, vT+6, vT+5, vT+2
    ph2 = D
    a(f"v_mul_f32 v{ph2}, v{al}, v{fg}")
    a(f"v_mul_f32 v{ph2}, 4.0, v{ph2}")
    for r in range(4):
        a(f"v_cos_f32 v{C8+4+r}, v{ph2}")
        a(f"v_sin_f32 v{S8+4+r}, v{ph2}")
        if r < 3: a(f"v_add_f32 v{ph2}, v{ph2}, v{al}")
    a(f"v_cndmask_b32 v{lo}, 0, -1, vcc")
    a(f"v_cndmask_b32 v{hi}, -1, 0, vcc")
    a(f"v_and_b32 v{sg}, s{sSign}, v{hi}")
    a(f"v_xor_b32 v{ng}, s{sSign}, v{sg}")
    a(f"v_cvt_pk_f16_f32 v{RE}, v{C8}, v{C8+1}")
    a(f"v_cvt_pk_f16_f32 v{RE+1}, v{C8+2}, v{C8+3}")
    a(f"v_cvt_pk_f16_f32 v{RE+2}, v{S8}, v{S8+1}")
    a(f"v_cvt_pk_f16_f32 v{RE+3}, v{S8+2}, v{S8+3}")
    a(f"v_xor_b32 v{IM}, v{RE+2}, v{ng}")
    a(f"v_xor_b32 v{IM+1}, v{RE+3}, v{ng}")
    a(f"v_xor_b32 v{IM+2}, v{RE}, v{sg}")
    a(f"v_xor_b32 v{IM+3}, v{RE+1}, v{sg}")
    x0, x1, y0, y1 = D+1, D+2, D+3, D+4
    a(f"v_cvt_pk_f16_f32 v{x0}, v{C8+4}, v{C8+5}")
    a(f"v_cvt_pk_f16_f32 v{x1}, v{C8+6}, v{C8+7}")
    a(f"v_cvt_pk_f16_f32 v{y0}, -v{S8+4}, -v{S8+5}")
    a(f"v_cvt_pk_f16_f32 v{y1}, -v{S8+6}, -v{S8+7}")
    a(f"v_cmp_ne_u32 vcc, 0, v{vN}")
    a(f"v_bfi_b32 v{y0}, v{MK1}, v{y0}, s47")
    a(f"v_bfi_b32 v{y1}, v{MK1}, v{y1}, s47")
    for dst, s0, s1 in ((SP0, x0, x1), (SP1, y0, y1)):
        a(f"v_and_b32 v{dst}, v{s0}, v{lo}")
        a(f"v_and_b32 v{dst+1}, v{s1}, v{lo}")
        a(f"v_and_b32 v{dst+2}, v{s0}, v{hi}")
        a(f"v_and_b32 v{dst+3}, v{s1}, v{hi}")
    cA, cB, cC, st = vT+2, vT+3, vT+4, vT+5
    a(f"v_lshl_add_u32 v{cA}, v{vG}, 7, v{vN}")
    a(f"v_sub_u32 v{cB}, 512, v{cA}")
    a(f"v_subrev_u32 v{cC}, 240, v{cA}")
    a(f"v_cndmask_b32 v{cB}, v{cC}, v{cB}, vcc")
    a(f"v_mov_b32 v{cC}, 1152")
    a(f"v_cndmask_b32 v{st}, v{cC}, v{st}, vcc") if False else None
    a(f"v_sub_u32 v{st}, 0, v{cC}")
    a(f"v_cndmask_b32 v{st}, v{cC}, v{st}, vcc")
    a(f"v_cmp_gt_u32 vcc, 2, v{vG}")
    a(f"s_lshl_b32 s45, s{sW}, 2")
    a(f"s_add_u32 s45, s45, {K1_OUT}")
    a(f"v_cndmask_b32 v{cB}, v{cB}, v{cA}, vcc")
    a(f"v_cndmask_b32 v{st}, v{st}, v{cC}, vcc")
    a(f"v_mad_u32_u24 v{OA}, v{cB}, 36, s45")
    a(f"v_add_u32 v{OA+1}, v{OA}, v{st}")
    a(f"v_add_u32 v{OA+2}, v{OA+1}, v{st}")
    a(f"v_add_u32 v{OA+3}, v{OA+2}, v{st}")
    a(f"s_lshl_b32 s46, s{sW}, 10")
    vWr = vT+6
    a(f"v_add_u32 v{vWr}, s46, v{vT+1}")
    a(f"v_lshlrev_b32 v{vTr}, 8, v{vG}")
    a(f"v_lshl_add_u32 v{vTr}, v{vN}, 3, v{vTr}")
    a(f"v_add_u32 v{vTr}, s46, v{vTr}")
    a.wait_vm("x")
    for j in range(4):
        a(f"v_lshlrev_b32 v{F+2*j}, 16, v{X+j}")
        a(f"v_and_b32 v{F+2*j+1}, s{sMask}, v{X+j}")
    a(f"v_pk_add_f32 {P(D)}, {P(F)}, {P(F+2)}")
    a(f"v_pk_add_f32 {P(D+2)}, {P(F+4)}, {P(F+6)}")
    a(f"v_pk_add_f32 {P(D)}, {P(D)}, {P(D+2)}")
    t = vT+2; u = vT+3
    a(f"v_add_f32 v{t}, v{D}, v{D+1}")
    wave_reduce(a, t)
    a(f"v_mul_f32 v{t}, {f32hex(1/512)}, v{t}")
    a(f"v_cvt_pk_bf16_f32 v{u}, v{t}, v{t}")
    a(f"v_readlane_b32 s48, v{t}, 63")
    a(f"v_lshlrev_b32 v{u}, 16, v{u}")
    a(f"v_readlane_b32 s50, v{u}, 63")
    bc = "op_sel_hi:[1,0] neg_lo:[0,1] neg_hi:[0,1]"
    for j in range(4):
        a(f"v_pk_add_f32 {P(D+2*j)}, {P(F+2*j)}, s[48:49] {bc}")
    acc = C8
    a(f"v_pk_mul_f32 {P(acc)}, {P(D)}, {P(D)}")
    a(f"v_pk_mul_f32 {P(acc+2)}, {P(D+2)}, {P(D+2)}")
    a(f"v_pk_fma_f32 {P(acc)}, {P(D+4)}, {P(D+4)}, {P(acc)}")
    a(f"v_pk_fma_f32 {P(acc+2)}, {P(D+6)}, {P(D+6)}, {P(acc+2)}")
    a(f"v_pk_add_f32 {P(acc)}, {P(acc)}, {P(acc+2)}")
    a(f"v_add_f32 v{t}, v{acc}, v{acc+1}")
    for j in range(4):
        a(f"v_pk_add_f32 {P(D+2*j)}, {P(F+2*j)}, s[50:51] {bc}")
    wave_reduce(a, t)
    for j in range(4):
        a(f"v_cvt_pk_bf16_f32 v{X+j}, v{D+2*j}, v{D+2*j+1}")
    a(f"v_mul_f32 v{t}, {f32hex(1/512)}, v{t}")
    a(f"v_cvt_pk_bf16_f32 v{t}, v{t}, v{t}")
    a(f"v_lshlrev_b32 v{t}, 16, v{t}")
    a(f"v_add_f32 v{t}, {f32hex(1e-5)}, v{t}")
    a(f"v_cvt_pk_bf16_f32 v{t}, v{t}, v{t}")
    a(f"v_lshlrev_b32 v{t}, 16, v{t}")
    a(f"v_sqrt_f32 v{t}, v{t}")
    for j in range(4):
        a(f"v_lshlrev_b32 v{F+2*j}, 16, v{X+j}")
        a(f"v_and_b32 v{F+2*j+1}, s{sMask}, v{X+j}")
    a(f"v_cvt_pk_bf16_f32 v{t}, v{t}, v{t}")
    a(f"v_lshlrev_b32 v{t}, 16, v{t}")
    a(f"v_rcp_f32 v{u}, v{t}")
    a(f"v_readlane_b32 s52, v{t}, 63")
    a(f"v_readlane_b32 s54, v{u}, 63")
    b1 = "op_sel_hi:[1,0]"
    for j in range(4):
        a(f"v_pk_mul_f32 {P(D+2*j)}, {P(F+2*j)}, s[54:55] {b1}")
    for j in range(4):
        a(f"v_pk_fma_f32 {P(F+2*j)}, {P(D+2*j)}, s[52:53], {P(F+2*j)} op_sel_hi:[1,0,1] neg_lo:[1,0,0] neg_hi:[1,0,0]")
    for j in range(4):
        a(f"v_pk_fma_f32 {P(D+2*j)}, {P(F+2*j)}, s[54:55], {P(D+2*j)} op_sel_hi:[1,0,1]")
    for j in range(4):
        a(f"v_cvt_pk_bf16_f32 v{X+j}, v{D+2*j}, v{D+2*j+1}")
    for j in range(4):
        a(f"v_lshlrev_b32 v{F+2*j}, 16, v{X+j}")
        a(f"v_and_b32 v{F+2*j+1}, s{sMask}, v{X+j}")
    for j in range(4):
        a(f"v_cvt_pkrtz_f16_f32 v{D+j}, v{F+2*j}, v{F+2*j+1}")
    a(f"ds_write_b128 v{vWr}, {Q(D)}", tag="xw")
    if XN_OFF: a(f"s_add_u32 s35, s35, {XN_OFF}")
    a(f"buffer_store_dwordx4 {Q(X)}, v{vT+1}, s[24:27], s35 offen", tag="st")
    a.wait_lg("xw")
    a(f"ds_read_b64_tr_b16 {P(AF)}, v{vTr}", tag="af")
    a(f"ds_read_b64_tr_b16 {P(AF+2)}, v{vTr} offset:128", tag="af")
    a.wait_vm("w")
    for r in range(4):
        a(f"v_lshl_or_b32 v{WR+r}, v{WI+r}, 16, v{WR+r}")
    a(f"buffer_store_dwordx4 {Q(WR)}, v{vWout}, s[24:27], s41 offen", tag="st")
    a.wait_lg("af")
    a(f"v_mfma_f32_16x16x32_f16 {Q(U0)}, {Q(AF)}, {Q(T0)}, 0")
    a(f"v_mfma_f32_16x16x32_f16 {Q(U1)}, {Q(AF)}, {Q(T1)}, 0")
    for h in range(2):
        a(f"v_pk_mul_f32 {P(F+2*h)}, {P(U0+2*h)}, {P(TWC+2*h)}")
        a(f"v_pk_mul_f32 {P(F+4+2*h)}, {P(U1+2*h)}, {P(TWC+2*h)}")
    for h in range(2):
        a(f"v_pk_fma_f32 {P(F+2*h)}, {P(U1+2*h)}, {P(TWS+2*h)}, {P(F+2*h)}")
        a(f"v_pk_fma_f32 {P(F+4+2*h)}, {P(U0+2*h)}, {P(TWS+2*h)}, {P(F+4+2*h)} neg_lo:[1,0,0] neg_hi:[1,0,0]")
    for j in range(4):
        a(f"v_cvt_pk_f16_f32 v{D+j}, v{F+2*j}, v{F+2*j+1}")
    for j in range(4):
        a(f"v_and_b32 v{B1+j}, v{D+j}, v{MK1}")
    for j in range(4):
        a(f"v_and_b32 v{B0+j}, v{D+j}, v{MK0}")
    a(f"v_mfma_f32_16x16x32_f16 {Q(DR)}, {Q(RE)}, {Q(B1)}, 0")
    a(f"v_mfma_f32_16x16x32_f16 {Q(DI)}, {Q(IM)}, {Q(B1)}, 0")
    a(f"v_mfma_f32_16x16x32_f16 {Q(DR)}, {Q(SP0)}, {Q(B0)}, {Q(DR)}")
    a(f"v_mfma_f32_16x16x32_f16 {Q(DI)}, {Q(SP1)}, {Q(B0)}, {Q(DI)}")
    rd, go = vT+2, vT+3
    a(f"v_lshrrev_b32 v{rd}, 1, v0")
    a(f"v_and_b32 v{go}, 1, v0")
    a(f"v_lshlrev_b32 v{go}, 4, v{go}")
    a(f"v_lshl_add_u32 v{vT+4}, v{rd}, 13, v{go}")
    a(f"v_mad_u32_u24 v{rd}, v{rd}, 36, v{go}")
    a("s_lshl_b32 s33, s33, 8")
    a("s_lshl_b32 s34, s34, 5")
    a("s_add_u32 s33, s33, s34")
    a(f"s_add_u32 s33, s33, {XT_OFF}")
    for r in range(4):
        a(f"v_cvt_pk_f16_f32 v{D+r}, v{DR+r}, v{DI+r}")
    for r in range(4):
        a(f"ds_write_b32 v{OA+r}, v{D+r}", tag="ow")
    a.wait_lg("ow")
    a("s_barrier")
    a(f"ds_read2_b32 {P(F)}, v{rd} offset0:{K1_OUT//4 % 256 if False else 0} offset1:1", tag="or") if False else None
    a(f"v_add_u32 v{rd}, {K1_OUT}, v{rd}")
    a(f"ds_read2_b32 {P(F)}, v{rd} offset0:0 offset1:1", tag="or")
    a(f"ds_read2_b32 {P(F+2)}, v{rd} offset0:2 offset1:3", tag="or")
    a.wait_lg("or")
    a(f"buffer_store_dwordx4 {Q(F)}, v{vT+4}, s[24:27], s33 offen", tag="st")
    a("s_endpgm")
    a.label("K1_WONLY")
    a("s_waitcnt vmcnt(0)")
    for r in range(4):
        a(f"v_lshl_or_b32 v{WR+r}, v{WI+r}, 16, v{WR+r}")
    a(f"buffer_store_dwordx4 {Q(WR)}, v{vWout}, s[24:27], s41 offen")
    a.label("K1_END")
    a("s_endpgm")
    a.vm = []; a.lg = []
```

```python
from asmlib import *
from layout import *
from k1 import f32hex, srd, P, Q

def cmul_pairs(a, ore, oim, re, im, c, s, n, conj):
    for h in range(0, n, 2):
        a(f"v_pk_mul_f32 {P(ore+h)}, {P(re+h)}, {P(c+h)}")
        a(f"v_pk_mul_f32 {P(oim+h)}, {P(im+h)}, {P(c+h)}")
    ng = " neg_lo:[1,0,0] neg_hi:[1,0,0]"
    for h in range(0, n, 2):
        a(f"v_pk_fma_f32 {P(ore+h)}, {P(im+h)}, {P(s+h)}, {P(ore+h)}" + ("" if conj else ng))
        a(f"v_pk_fma_f32 {P(oim+h)}, {P(re+h)}, {P(s+h)}, {P(oim+h)}" + (ng if conj else ""))

def gen_fft_role(a, sCol):
    vI, vG, vL = 1, 2, 3
    vT = 4
    XF = 16
    CA = 48
    CAI = 80
    CB = 104
    CBI = 128
    TW1C = 152; TW1S = 160
    TW2C = 168; TW2S = 176
    WP = 184
    AC = 192
    AD = 208
    PK = 224
    WU = 232
    sSign = 29; sMask = 28
    a(f"v_and_b32 v{vI}, 15, v0")
    a(f"v_bfe_u32 v{vG}, v0, 4, 2")
    a(f"v_and_b32 v{vL}, 63, v0")
    a(f"s_and_b32 s40, s{sCol}, 255")
    a("s_lshl_b32 s40, s40, 13")
    a(f"s_add_u32 s41, s40, {XT_OFF}")
    a(f"s_add_u32 s42, s40, {XT_OFF+4096}")
    a(f"s_lshl_b32 s43, s{sCol}, 13")
    a("s_lshl_b32 s44, s3, 11")
    a("s_add_u32 s43, s43, s44")
    a(f"s_add_u32 s43, s43, {WT_OFF}")
    a(f"v_lshlrev_b32 v{vT}, 8, v{vI}")
    a(f"v_lshl_add_u32 v{vT}, v{vG}, 4, v{vT}")
    a(f"v_lshlrev_b32 v{vT+1}, 5, v{vL}")
    for mt in range(2):
        for t in range(4):
            a(f"buffer_load_dwordx4 {Q(XF+16*mt+4*t)}, v{vT}, s[24:27], s{41+mt} offen offset:{64*t}", tag=f"x{t}")
    a(f"buffer_load_dwordx4 {Q(WP)}, v{vT+1}, s[24:27], s43 offen", tag="w")
    a(f"buffer_load_dwordx4 {Q(WP+4)}, v{vT+1}, s[24:27], s43 offen offset:16", tag="w")
    a(f"s_mov_b32 s{sMask}, 0xffff0000")
    a(f"s_mov_b32 s{sSign}, 0x80008000")
    fi, fg, fk, al, ph, p2, a16 = vT+2, vT+3, vT+4, vT+5, vT+6, vT+7, vT+8
    a("s_lshl_b32 s45, s3, 4")
    a(f"v_add_u32 v{fk}, s45, v{vI}")
    a(f"v_cvt_f32_u32 v{fi}, v{vI}")
    a(f"v_cvt_f32_u32 v{fg}, v{vG}")
    a(f"v_cvt_f32_u32 v{fk}, v{fk}")
    a(f"v_mul_f32 v{al}, {f32hex(1/64)}, v{fk}")
    a(f"v_mul_f32 v{ph}, v{al}, v{fg}")
    a(f"v_mul_f32 v{ph}, 4.0, v{ph}")
    a(f"v_mul_f32 v{a16}, {f32hex(13.0)}, v{al}")
    C4 = WU; S4 = WU + 4
    for t in range(4):
        for j in range(4):
            a(f"v_cos_f32 v{C4+j}, v{ph}")
            a(f"v_sin_f32 v{S4+j}, v{ph}")
            if t < 2:
                a(f"v_mul_f32 v{p2}, {f32hex(1/32)}, v{ph}")
            if j < 3: a(f"v_add_f32 v{ph}, v{ph}, v{al}")
            elif t < 3: a(f"v_add_f32 v{ph}, v{ph}, v{a16}")
            if t < 2:
                a(f"v_cos_f32 v{TW1C+4*t+j}, v{p2}")
                a(f"v_sin_f32 v{TW1S+4*t+j}, v{p2}")
        for j in range(4):
            a(f"v_cvt_pk_f16_f32 v{CA+8*t+j}, v{C4+j}, v{S4+j}")
            a(f"v_cvt_pk_f16_f32 v{CA+8*t+4+j}, -v{S4+j}, v{C4+j}")
        b = CAI + 6*t
        a(f"v_cvt_pk_bf16_f32 v{b}, v{S4}, v{S4+1}")
        a(f"v_cvt_pk_bf16_f32 v{b+1}, v{S4+2}, v{S4+3}")
        a(f"v_cvt_pk_bf16_f32 v{b+2}, v{C4}, v{C4+1}")
        a(f"v_cvt_pk_bf16_f32 v{b+3}, v{C4+2}, v{C4+3}")
        a(f"v_xor_b32 v{b+4}, s{sSign}, v{b}")
        a(f"v_xor_b32 v{b+5}, s{sSign}, v{b+1}")
    a(f"v_mul_f32 v{al}, {f32hex(1/32)}, v{fi}")
    a(f"v_mul_f32 v{ph}, v{al}, v{fg}")
    a(f"v_mul_f32 v{ph}, 4.0, v{ph}")
    for j in range(4):
        a(f"v_cos_f32 v{C4+j}, v{ph}")
        a(f"v_sin_f32 v{S4+j}, v{ph}")
        if j < 3: a(f"v_add_f32 v{ph}, v{ph}, v{al}")
    lm, lm2 = vT+9, vT+10
    a(f"v_and_b32 v{lm}, 1, v{vI}")
    a(f"v_mul_u32_u24 v{lm}, 0x8000, v{lm}")
    a(f"v_lshl_or_b32 v{lm}, v{lm}, 16, v{lm}")
    a(f"s_brev_b32 s46, 1")
    a(f"v_xor_b32 v{lm2}, s46, v{lm}")
    b0 = CB
    a(f"v_cvt_pk_f16_f32 v{b0}, -v{S4}, -v{S4+1}")
    a(f"v_cvt_pk_f16_f32 v{b0+1}, -v{S4+2}, -v{S4+3}")
    a(f"v_cvt_pk_f16_f32 v{b0+2}, v{C4}, v{C4+1}")
    a(f"v_cvt_pk_f16_f32 v{b0+3}, v{C4+2}, v{C4+3}")
    a(f"v_cvt_pk_f16_f32 v{b0+4}, v{S4}, v{S4+1}")
    a(f"v_cvt_pk_f16_f32 v{b0+5}, v{S4+2}, v{S4+3}")
    sc = f32hex(2.0**-19)
    for j in range(8):
        a(f"v_mul_f32 v{C4+j}, {sc}, v{C4+j}")
    b1 = CBI
    a(f"v_cvt_pk_bf16_f32 v{b1}, v{S4}, v{S4+1}")
    a(f"v_cvt_pk_bf16_f32 v{b1+1}, v{S4+2}, v{S4+3}")
    a(f"v_cvt_pk_bf16_f32 v{b1+2}, v{C4}, v{C4+1}")
    a(f"v_cvt_pk_bf16_f32 v{b1+3}, v{C4+2}, v{C4+3}")
    a(f"v_cvt_pk_bf16_f32 v{b1+4}, -v{S4}, -v{S4+1}")
    a(f"v_cvt_pk_bf16_f32 v{b1+5}, -v{S4+2}, -v{S4+3}")
    for base in (CB, CBI):
        for j in range(6):
            a(f"v_xor_b32 v{base+6+j}, v{base+j}, v{lm}")
            a(f"v_xor_b32 v{base+12+j}, s46, v{base+j}")
            a(f"v_xor_b32 v{base+18+j}, v{base+j}, v{lm2}")
    a(f"v_lshlrev_b32 v{p2}, 2, v{vG}")
    a(f"v_add_u32 v{p2}, s45, v{p2}")
    a(f"v_cvt_f32_u32 v{p2}, v{p2}")
    a(f"v_mul_f32 v{al}, {f32hex(1/2048)}, v{fi}")
    for mt in range(2):
        if mt: a(f"v_add_f32 v{al}, {f32hex(16/2048)}, v{al}")
        a(f"v_mul_f32 v{ph}, v{al}, v{p2}")
        for r in range(4):
            a(f"v_cos_f32 v{TW2C+4*mt+r}, v{ph}")
            a(f"v_sin_f32 v{TW2S+4*mt+r}, v{ph}")
            if r < 3: a(f"v_add_f32 v{ph}, v{ph}, v{al}")
    vEx = vT+11
    a(f"v_lshlrev_b32 v{vEx}, 4, v{vL}")
    a(f"v_add_u32 v{vT+1}, s44, v{vEx}")
    a.wait_vm("x3")
    a(f"s_and_b32 s47, s{sCol}, 255")
    a("s_cmp_lg_u32 s47, 0")
    a("s_cbranch_scc1 FFT_NORM")
    a(f"s_lshr_b32 s47, s{sCol}, 4")
    for j in range(32):
        a(f"v_bfe_u32 v{XF+j}, v{XF+j}, s47, 16")
    a.label("FFT_NORM")
    for t in range(4):
        for mt in range(2):
            for ri in range(2):
                c = "0" if t == 0 else Q(AC+8*ri+4*mt)
                a(f"v_mfma_f32_16x16x32_f16 {Q(AC+8*ri+4*mt)}, {Q(XF+16*mt+4*t)}, {Q(CA+8*t+4*ri)}, {c}")
    a.wait_vm("w")
    for j in range(8):
        a(f"v_lshlrev_b32 v{WU+j}, 16, v{WP+j}")
        a(f"v_and_b32 v{WU+8+j}, s{sMask}, v{WP+j}")
    cmul_pairs(a, AD, AD+8, AC, AC+8, TW1C, TW1S, 8, True)
    for mt in range(2):
        a(f"v_cvt_pk_f16_f32 v{PK+4*mt}, v{AD+4*mt}, v{AD+4*mt+1}")
        a(f"v_cvt_pk_f16_f32 v{PK+4*mt+1}, v{AD+4*mt+2}, v{AD+4*mt+3}")
        a(f"v_cvt_pk_f16_f32 v{PK+4*mt+2}, v{AD+8+4*mt}, v{AD+8+4*mt+1}")
        a(f"v_cvt_pk_f16_f32 v{PK+4*mt+3}, v{AD+8+4*mt+2}, v{AD+8+4*mt+3}")
    for tp in range(2):
        for qt in range(2):
            for ri in range(2):
                blk = CB + 12*qt + 6*tp
                fr = blk + 2 if ri == 0 else blk
                c = "0" if tp == 0 else Q(AC+8*ri+4*qt)
                a(f"v_mfma_f32_16x16x32_f16 {Q(AC+8*ri+4*qt)}, {Q(fr)}, {Q(PK+4*tp)}, {c}")
    cmul_pairs(a, AD, AD+8, AC, AC+8, WU, WU+8, 8, False)
    for qt in range(2):
        a(f"v_cvt_pk_bf16_f32 v{PK+4*qt}, v{AD+4*qt}, v{AD+4*qt+1}")
        a(f"v_cvt_pk_bf16_f32 v{PK+4*qt+1}, v{AD+4*qt+2}, v{AD+4*qt+3}")
        a(f"v_cvt_pk_bf16_f32 v{PK+4*qt+2}, v{AD+8+4*qt}, v{AD+8+4*qt+1}")
        a(f"v_cvt_pk_bf16_f32 v{PK+4*qt+3}, v{AD+8+4*qt+2}, v{AD+8+4*qt+3}")
    for qt in range(2):
        for mt in range(2):
            for ri in range(2):
                blk = CBI + 12*mt + 6*qt
                fr = blk + 2 if ri == 0 else blk
                c = "0" if qt == 0 else Q(AC+8*ri+4*mt)
                a(f"v_mfma_f32_16x16x32_bf16 {Q(AC+8*ri+4*mt)}, {Q(PK+4*qt)}, {Q(fr)}, {c}")
    cmul_pairs(a, AD, AD+8, AC, AC+8, TW2C, TW2S, 8, False)
    for mt in range(2):
        a(f"v_cvt_pk_bf16_f32 v{PK+4*mt}, v{AD+4*mt}, v{AD+4*mt+1}")
        a(f"v_cvt_pk_bf16_f32 v{PK+4*mt+1}, v{AD+4*mt+2}, v{AD+4*mt+3}")
        a(f"v_cvt_pk_bf16_f32 v{PK+4*mt+2}, v{AD+8+4*mt}, v{AD+8+4*mt+1}")
        a(f"v_cvt_pk_bf16_f32 v{PK+4*mt+3}, v{AD+8+4*mt+2}, v{AD+8+4*mt+3}")
    a(f"ds_write_b128 v{vT+1}, {Q(PK)}", tag="ew")
    a(f"ds_write_b128 v{vT+1}, {Q(PK+4)} offset:1024", tag="ew")
    vO = vT
    a(f"v_and_b32 v{vT+2}, 1, v{vG}")
    a(f"v_lshrrev_b32 v{vT+3}, 1, v{vG}")
    a(f"v_lshl_add_u32 v{vT+2}, v{vT+2}, 1, v{vT+3}")
    a(f"v_lshl_add_u32 v{vT+2}, v{vI}, 2, v{vT+2}")
    a(f"v_lshlrev_b32 v{vO}, 5, v{vT+2}")
    a("s_add_u32 s40, s40, s44")
    a(f"s_add_u32 s40, s40, {YT_OFF}")
    a(f"s_lshr_b32 s47, s{sCol}, 4")
    a("s_and_b32 s47, s47, 16")
    a("s_add_u32 s40, s40, s47")
    a.wait_lg("ew")
    a("s_barrier")
    for u in range(4):
        for mt in range(2):
            a(f"ds_read_b128 {Q(XF+8*u+4*mt)}, v{vEx} offset:{2048*u+1024*mt}", tag=f"e{u}")
    for u in range(4):
        a.wait_lg(f"e{u}")
        for mt in range(2):
            for ri in range(2):
                blk = CAI + 6*u
                fr = blk + 2 if ri == 0 else blk
                c = "0" if u == 0 else Q(AC+8*ri+4*mt)
                a(f"v_mfma_f32_16x16x32_bf16 {Q(AC+8*ri+4*mt)}, {Q(XF+8*u+4*mt)}, {Q(fr)}, {c}")
    for ri in range(2):
        for mt in range(2):
            a(f"v_cvt_pk_bf16_f32 v{PK+4*ri+2*mt}, v{AC+8*ri+4*mt}, v{AC+8*ri+4*mt+1}")
            a(f"v_cvt_pk_bf16_f32 v{PK+4*ri+2*mt+1}, v{AC+8*ri+4*mt+2}, v{AC+8*ri+4*mt+3}")
    for ri in range(2):
        a(f"v_permlane16_swap_b32 v{PK+4*ri}, v{PK+4*ri+2}")
        a(f"v_permlane16_swap_b32 v{PK+4*ri+1}, v{PK+4*ri+3}")
    a(f"buffer_store_dwordx4 {Q(PK)}, v{vO}, s[24:27], s40 offen")
    a(f"s_and_b32 s47, s{sCol}, 255")
    a("s_cmp_eq_u32 s47, 0")
    a("s_cbranch_scc1 K2_END")
    a(f"buffer_store_dwordx4 {Q(PK+4)}, v{vO}, s[24:27], s40 offen offset:16")
    a("s_endpgm")
    a.vm = []; a.lg = []


def gen_gemm1_role(a, sMt, sNt):
    NSLOT = 6; STG = 12288
    vI, vG, vL = 1, 2, 3
    vT = 4
    vD = 16
    vRe, vRo, vRe2, vRo2 = 19, 20, 21, 22
    vA = 23
    WF = 24
    ACC = 72
    AX = 120
    a(f"v_and_b32 v{vI}, 15, v0")
    a(f"v_bfe_u32 v{vG}, v0, 4, 2")
    a(f"v_and_b32 v{vL}, 63, v0")
    a("s_mul_i32 s40, s3, 192")
    a(f"s_mul_i32 s41, s{sNt}, 192")
    a("s_mov_b32 s42, 0x15555556")
    for j in range(3):
        idx, row, cp = vT, vT+1, vT+2
        a(f"v_add_u32 v{idx}, s40, v{vL}")
        if j: a(f"v_add_u32 v{idx}, {64*j}, v{idx}")
        a(f"v_mul_hi_u32 v{row}, v{idx}, s42")
        a(f"v_mul_u32_u24 v{cp}, 12, v{row}")
        a(f"v_sub_u32 v{cp}, v{idx}, v{cp}")
        a(f"v_bfe_u32 v{idx}, v{row}, 3, 1")
        a(f"v_lshlrev_b32 v{idx}, 1, v{idx}")
        a(f"v_xor_b32 v{cp}, v{cp}, v{idx}")
        a(f"v_mul_u32_u24 v{row}, 2752, v{row}")
        a(f"v_lshl_add_u32 v{row}, v{cp}, 4, v{row}")
        a(f"v_add_u32 v{vD+j}, s41, v{row}")
        if j: a(f"v_subrev_u32 v{vD+j}, {1024*j}, v{vD+j}")
    a(f"s_lshl_b32 s43, s{sMt}, 17")
    a("s_lshl_b32 s44, s3, 15")
    a("s_add_u32 s43, s43, s44")
    if XN_OFF: a(f"s_add_u32 s43, s43, {XN_OFF}")
    a("s_add_u32 s44, s43, 16384")
    a(f"v_lshlrev_b32 v{vA}, 10, v{vI}")
    a(f"v_lshl_add_u32 v{vA}, v{vG}, 4, v{vA}")
    a("s_mul_i32 s45, s3, 3072")
    def dma(t):
        slot = t % NSLOT
        a(f"s_add_u32 m0, s45, {slot*STG}")
        a(f"s_mov_b32 s46, {t*64*2752}")
        for j in range(3):
            a(f"buffer_load_dwordx4 v{vD+j}, s[20:23], s46 offen offset:{1024*j} lds", tag=f"b{t}")
    def aload(s):
        for rt in range(2):
            a(f"buffer_load_dwordx4 {Q(AX+8*s+4*rt)}, v{vA}, s[24:27], s{43+rt} offen offset:{64*s}", tag=f"a{s}")
    for t in range(NSLOT):
        dma(t); aload(2*t); aload(2*t+1)
    for s in range(2*NSLOT, 16): aload(s)
    a(f"v_lshrrev_b32 v{vT}, 2, v{vI}")
    a(f"v_lshl_add_u32 v{vT}, v{vG}, 3, v{vT}")
    a(f"v_mul_u32_u24 v{vT}, 192, v{vT}")
    a(f"v_and_b32 v{vT+1}, 3, v{vI}")
    a(f"v_lshl_add_u32 v{vT}, v{vT+1}, 3, v{vT}")
    a(f"v_and_b32 v{vT+1}, 1, v{vG}")
    a(f"v_lshlrev_b32 v{vT+1}, 5, v{vT+1}")
    a(f"v_add_u32 v{vRe}, v{vT}, v{vT+1}")
    a(f"v_sub_u32 v{vRo}, v{vT}, v{vT+1}")
    a(f"v_add_u32 v{vRe2}, {3*STG}, v{vRe}")
    a(f"v_add_u32 v{vRo2}, {3*STG}, v{vRo}")
    def reads(s):
        t = s // 2; ks = s % 2; slot = t % NSLOT
        st = WF + 24*(s % 2)
        for j in range(6):
            base = (vRe if j % 2 == 0 else vRo) if slot < 3 else (vRe2 if j % 2 == 0 else vRo2)
            off = (slot % 3)*STG + ks*6144 + j*32
            a(f"ds_read_b64_tr_b16 {P(st+4*j)}, v{base} offset:{off}", tag=f"r{s}")
            a(f"ds_read_b64_tr_b16 {P(st+4*j+2)}, v{base} offset:{off+768}", tag=f"r{s}")
    a.wait_vm("b0")
    a("s_barrier")
    reads(0)
    for s in range(16):
        if s + 1 < 16:
            if (s + 1) % 2 == 0:
                tn = (s + 1) // 2
                a.wait_vm(f"b{tn}")
                a("s_barrier")
                if NSLOT <= tn + NSLOT - 2 <= 7: dma(tn + NSLOT - 2)
            reads(s + 1)
        a.wait_lg(f"r{s}")
        a.wait_vm(f"a{s}")
        st = WF + 24*(s % 2)
        for j in range(6):
            for rt in range(2):
                d = ACC + 24*rt + 4*j
                c = "0" if s == 0 else Q(d)
                a(f"v_mfma_f32_16x16x32_bf16 {Q(d)}, {Q(st+4*j)}, {Q(AX+8*s+4*rt)}, {c}")
    a(f"v_and_b32 v{vT}, 1, v{vG}")
    a(f"v_lshlrev_b32 v{vT}, 5, v{vT}")
    a(f"v_lshrrev_b32 v{vT+1}, 1, v{vG}")
    a(f"v_lshl_add_u32 v{vT}, v{vT+1}, 4, v{vT}")
    a(f"v_mul_u32_u24 v{vT+1}, 2752, v{vI}")
    a(f"v_add_u32 v{vA}, v{vT}, v{vT+1}")
    a(f"s_lshl_b32 s43, s{sMt}, 7")
    a("s_lshl_b32 s44, s3, 5")
    a("s_add_u32 s43, s43, s44")
    a("s_mul_i32 s43, s43, 2752")
    a("s_add_u32 s43, s43, s41")
    a(f"s_add_u32 s43, s43, {H_OFF}")
    a(f"s_add_u32 s44, s43, {16*2752}")
    a("s_mov_b32 s28, 0xffff0000")
    a(f"s_mov_b32 s46, {f32hex(-1.4426950408889634)}")
    E = AX
    for p in range(3):
        if p == 1:
            a(f"s_cmp_eq_u32 s{sNt}, 14")
            a("s_cbranch_scc1 K2_END")
        for rt in range(2):
            src = ACC + 24*rt + 8*p
            hb = E + 32*rt; e = hb + 8; pk = hb + 16
            for j in range(4):
                a(f"v_cvt_pk_bf16_f32 v{pk+j}, v{src+2*j}, v{src+2*j+1}")
            for j in range(4):
                a(f"v_lshlrev_b32 v{hb+2*j}, 16, v{pk+j}")
                a(f"v_and_b32 v{hb+2*j+1}, s28, v{pk+j}")
            for j in range(4):
                a(f"v_pk_mul_f32 {P(e+2*j)}, {P(hb+2*j)}, s[46:47] op_sel_hi:[1,0]")
            for j in range(8):
                a(f"v_exp_f32 v{e+j}, v{e+j}")
            for j in range(4):
                a(f"v_pk_add_f32 {P(e+2*j)}, {P(e+2*j)}, 1.0 op_sel_hi:[1,0]")
            for j in range(8):
                a(f"v_rcp_f32 v{e+j}, v{e+j}")
            for j in range(4):
                a(f"v_pk_mul_f32 {P(e+2*j)}, {P(e+2*j)}, {P(hb+2*j)}")
            for j in range(4):
                a(f"v_cvt_pk_bf16_f32 v{pk+4+j}, v{e+2*j}, v{e+2*j+1}")
            a(f"v_permlane16_swap_b32 v{pk+4}, v{pk+6}")
            a(f"v_permlane16_swap_b32 v{pk+5}, v{pk+7}")
            a(f"buffer_store_dwordx4 {Q(pk+4)}, v{vA}, s[24:27], s{43+rt} offen offset:{64*p}")
        E = AX + 64 if p % 2 == 0 else AX
    a("s_endpgm")
    a.vm = []; a.lg = []


def gen_k2(a, name):
    a.raw(f".globl {name}\n.p2align 8\n.type {name},@function\n{name}:")
    a("s_cmp_gt_u32 s2, 512")
    a("s_cbranch_scc1 K2_END")
    a("s_load_dwordx2 s[8:9], s[0:1], 32")
    a("s_load_dwordx2 s[10:11], s[0:1], 64")
    a("v_lshrrev_b32 v4, 6, v0")
    a("v_readfirstlane_b32 s3, v4")
    a("s_lshr_b32 s30, s2, 3")
    a("s_lshr_b32 s31, s2, 8")
    a("s_add_u32 s30, s30, s31")
    a("s_lshr_b32 s31, s2, 4")
    a("s_lshl_b32 s31, s31, 3")
    a("s_and_b32 s32, s2, 7")
    a("s_or_b32 s31, s31, s32")
    a("s_waitcnt lgkmcnt(0)")
    srd(a, 24, 10, 11, WS_SIZE)
    srd(a, 20, 8, 9, 512*2752)
    a("s_cmp_eq_u32 s2, 512")
    a("s_cbranch_scc1 K2_FFT")
    a("s_bitcmp1_b32 s30, 0")
    a("s_cbranch_scc1 K2_FFT")
    a("s_lshr_b32 s33, s31, 3")
    a("s_lshr_b32 s34, s32, 1")
    a("s_lshl_b32 s34, s34, 2")
    a("s_and_b32 s35, s33, 3")
    a("s_add_u32 s34, s34, s35")
    a("s_and_b32 s35, s32, 1")
    a("s_lshl_b32 s35, s35, 3")
    a("s_lshr_b32 s33, s33, 2")
    a("s_add_u32 s35, s35, s33")
    a("s_cmp_gt_u32 s35, 14")
    a("s_cbranch_scc1 K2_END")
    gen_gemm1_role(a, 34, 35)
    a.label("K2_FFT")
    gen_fft_role(a, 31)
    a.label("K2_END")
    a("s_endpgm")
```

```python
from asmlib import *
from layout import *
from k1 import f32hex, srd, P, Q
from k2 import cmul_pairs

def gen_rowifft(a, sSb, sHalf, ldsbase, nthreads, R0=1, endlabel=None, store_mods=""):
    vI, vG, vL = R0, R0+1, R0+2
    vT = R0+3
    base = (R0 + 15 + 3) // 4 * 4
    LD = base
    RE2 = base+16; IM2 = base+20; SP0 = base+24; SP1 = base+28
    TWC = base+32; TWS = base+36
    B1 = base+40
    TR = base+48; TI = base+64
    C8 = base+80; S8 = base+88
    XV = base+96
    OUT = base+112
    M0F = base+120
    AD = base+128
    last = base+132
    sSign = 29; sMask = 28
    nld = 512 // nthreads
    a(f"v_and_b32 v{vI}, 15, v0")
    a(f"v_bfe_u32 v{vG}, v0, 4, 2")
    a(f"v_and_b32 v{vL}, 63, v0")
    a(f"v_lshrrev_b32 v{vT}, 1, v0")
    a(f"v_and_b32 v{vT+1}, 1, v0")
    a(f"v_lshlrev_b32 v{vT+1}, 4, v{vT+1}")
    a(f"v_lshl_add_u32 v{vT}, v{vT}, 13, v{vT+1}")
    a(f"s_lshl_b32 s40, s{sSb}, 5")
    a(f"s_add_u32 s40, s40, {YT_OFF}")
    for j in range(nld):
        if j: a(f"s_add_u32 s40, s40, {(nthreads//2)*8192}")
        a(f"buffer_load_dwordx4 {Q(LD+4*j)}, v{vT}, s[24:27], s40 offen", tag="y")
    a(f"s_lshl_b32 s41, s{sSb}, 13")
    a(f"s_lshl_b32 s42, s{sHalf}, 12")
    a("s_add_u32 s41, s41, s42")
    vX = vT+2
    a(f"v_lshlrev_b32 v{vX}, 5, v{vI}")
    a(f"v_lshl_add_u32 v{vX}, v{vG}, 3, v{vX}")
    for i in range(4):
        for at in range(2):
            a(f"buffer_load_dwordx2 {P(XV+4*i+2*at)}, v{vX}, s[12:15], s41 offen offset:{1024*i+512*at}", tag="xv")
    a(f"s_mov_b32 s{sMask}, 0xffff0000")
    a(f"s_mov_b32 s{sSign}, 0x80008000")
    fi, fg, al, ph, p2 = vT+3, vT+4, vT+5, vT+6, vT+7
    a(f"v_cvt_f32_u32 v{fi}, v{vI}")
    a(f"v_cvt_f32_u32 v{fg}, v{vG}")
    a(f"v_mul_f32 v{al}, {f32hex(1/16)}, v{fi}")
    a(f"v_mul_f32 v{ph}, v{al}, v{fg}")
    a(f"v_mul_f32 v{ph}, 4.0, v{ph}")
    a(f"v_mul_f32 v{p2}, {f32hex(-15/32)}, v{fi}")
    a(f"v_cmp_gt_u32 vcc, 2, v{vG}")
    a(f"v_cndmask_b32 v{p2}, v{p2}, 0, vcc")
    for e in range(4):
        a(f"v_cos_f32 v{C8+e}, v{ph}")
        a(f"v_sin_f32 v{S8+e}, v{ph}")
        a(f"v_add_f32 v{vT+8}, v{ph}, v{p2}")
        if e < 3: a(f"v_add_f32 v{ph}, v{ph}, v{al}")
        a(f"v_cos_f32 v{C8+4+e}, v{vT+8}")
        a(f"v_sin_f32 v{S8+4+e}, v{vT+8}")
    lo, hi, sg = vT+8, vT+9, vT+10
    a(f"v_cndmask_b32 v{lo}, 0, -1, vcc")
    a(f"v_cndmask_b32 v{hi}, -1, 0, vcc")
    a(f"v_and_b32 v{sg}, s{sSign}, v{hi}")
    a(f"v_cvt_pk_bf16_f32 v{RE2}, v{C8}, v{C8+1}")
    a(f"v_cvt_pk_bf16_f32 v{RE2+1}, v{C8+2}, v{C8+3}")
    a(f"v_cvt_pk_bf16_f32 v{RE2+2}, -v{S8}, -v{S8+1}")
    a(f"v_cvt_pk_bf16_f32 v{RE2+3}, -v{S8+2}, -v{S8+3}")
    a(f"v_cvt_pk_bf16_f32 v{IM2}, v{S8}, v{S8+1}")
    a(f"v_cvt_pk_bf16_f32 v{IM2+1}, v{S8+2}, v{S8+3}")
    a(f"v_xor_b32 v{IM2+2}, v{RE2}, v{sg}")
    a(f"v_xor_b32 v{IM2+3}, v{RE2+1}, v{sg}")
    a(f"v_xor_b32 v{RE2+2}, v{RE2+2}, v{sg}")
    a(f"v_xor_b32 v{RE2+3}, v{RE2+3}, v{sg}")
    a(f"v_and_b32 v{vT+11}, 1, v{vI}")
    a(f"v_lshlrev_b32 v{vT+11}, 31, v{vT+11}")
    a(f"v_xor_b32 v{vT+11}, {f32hex(-0.5)}, v{vT+11}")
    a(f"v_cmp_eq_u32 vcc, 0, v{vG}")
    a(f"v_cndmask_b32 v{C8+4}, v{C8+4}, 0.5, vcc")
    a(f"v_cndmask_b32 v{S8+4}, v{S8+4}, v{vT+11}, vcc")
    x0 = TR
    a(f"v_cvt_pk_bf16_f32 v{x0}, v{C8+4}, v{C8+5}")
    a(f"v_cvt_pk_bf16_f32 v{x0+1}, v{C8+6}, v{C8+7}")
    a(f"v_cvt_pk_bf16_f32 v{x0+2}, -v{S8+4}, -v{S8+5}")
    a(f"v_cvt_pk_bf16_f32 v{x0+3}, -v{S8+6}, -v{S8+7}")
    for j in range(4):
        a(f"v_and_b32 v{SP0+j}, v{x0+j}, v{lo}")
        a(f"v_and_b32 v{SP1+j}, v{x0+j}, v{hi}")
    a(f"v_mul_f32 v{al}, {f32hex(1/512)}, v{fi}")
    a(f"v_mul_f32 v{ph}, v{al}, v{fg}")
    a(f"v_mul_f32 v{al}, 4.0, v{al}")
    for tj in range(4):
        a(f"v_cos_f32 v{TWC+tj}, v{ph}")
        a(f"v_sin_f32 v{TWS+tj}, v{ph}")
        if tj < 3: a(f"v_add_f32 v{ph}, v{ph}, v{al}")
    a(f"v_and_b32 v{vT+11}, 1, v{vI}")
    a(f"v_lshlrev_b32 v{vT+11}, 31, v{vT+11}")
    a(f"v_xor_b32 v{vT+11}, {f32hex(-1.0)}, v{vT+11}")
    for at in range(2):
        a(f"v_mul_f32 v{al}, {f32hex(1/32)}, v{fi}")
        if at: a(f"v_add_f32 v{al}, 0.5, v{al}")
        a(f"v_mul_f32 v{ph}, v{al}, v{fg}")
        a(f"v_mul_f32 v{al}, 4.0, v{al}")
        for e in range(4):
            a(f"v_cos_f32 v{C8+e}, v{ph}")
            a(f"v_sin_f32 v{S8+e}, v{ph}")
            if e < 3: a(f"v_add_f32 v{ph}, v{ph}, v{al}")
        a(f"v_cndmask_b32 v{S8}, v{S8}, v{vT+11}, vcc")
        a(f"v_cvt_pk_bf16_f32 v{B1+4*at}, v{C8}, v{C8+1}")
        a(f"v_cvt_pk_bf16_f32 v{B1+4*at+1}, v{C8+2}, v{C8+3}")
        a(f"v_cvt_pk_bf16_f32 v{B1+4*at+2}, -v{S8}, -v{S8+1}")
        a(f"v_cvt_pk_bf16_f32 v{B1+4*at+3}, -v{S8+2}, -v{S8+3}")
    r_, cc_, cA, cB = vT+3, vT+4, vT+5, vT+6
    a(f"v_lshrrev_b32 v{r_}, 2, v{vI}")
    a(f"v_and_b32 v{cc_}, 3, v{vI}")
    a(f"v_lshl_add_u32 v{r_}, v{vG}, 2, v{r_}")
    a(f"v_lshl_add_u32 v{cA}, v{r_}, 5, v{cc_}")
    a(f"v_sub_u32 v{cB}, 512, v{cA}")
    a(f"v_cmp_gt_u32 vcc, 2, v{vG}")
    a(f"v_cndmask_b32 v{cB}, v{cB}, v{cA}, vcc")
    a(f"v_mov_b32 v{vT+7}, 128")
    a(f"v_sub_u32 v{vT+8}, 0, v{vT+7}")
    a(f"v_cndmask_b32 v{vT+7}, v{vT+8}, v{vT+7}, vcc")
    a(f"s_lshl_b32 s43, s{sHalf}, 3")
    a(f"s_add_u32 s43, s43, {ldsbase}")
    a(f"v_lshl_add_u32 v{AD}, v{cB}, 5, s43")
    a(f"v_add_u32 v{AD+1}, v{AD}, v{vT+7}")
    a(f"v_add_u32 v{AD+2}, v{AD+1}, v{vT+7}")
    a(f"v_add_u32 v{AD+3}, v{AD+2}, v{vT+7}")
    a(f"v_subrev_u32 v{cA}, 240, v{cA}")
    a(f"v_lshl_add_u32 v{cA}, v{cA}, 5, s43")
    a(f"v_cmp_eq_u32 vcc, 512, v{cB}") if False else None
    a(f"v_lshrrev_b32 v{vT+8}, 1, v{vG}")
    a(f"v_sub_u32 v{vT+8}, v{cc_}, v{vT+8}")
    a(f"v_cmp_eq_u32 vcc, -1, v{vT+8}")
    a(f"v_cndmask_b32 v{AD}, v{AD}, v{cA}, vcc")
    mk0, mk1 = vT+3, vT+4
    a(f"v_cmp_gt_u32 vcc, 4, v{vI}")
    a(f"v_cndmask_b32 v{mk0}, 0, -1, vcc")
    a(f"v_cndmask_b32 v{mk1}, -1, 0, vcc")
    a(f"v_lshlrev_b32 v{vT}, 4, v0")
    a.wait_vm("y")
    for j in range(nld):
        a(f"ds_write_b128 v{vT}, {Q(LD+4*j)} offset:{ldsbase + nthreads*16*j}", tag="yw")
    a.wait_lg("yw")
    a("s_barrier")
    if endlabel is not None:
        a("s_cmp_gt_u32 s3, 1")
        a(f"s_cbranch_scc1 {endlabel}")
    for tj in range(4):
        a(f"ds_read_b64_tr_b16 {P(LD+4*tj)}, v{AD+tj}", tag=f"t{tj}")
        a(f"ds_read_b64_tr_b16 {P(LD+4*tj+2)}, v{AD+tj} offset:16", tag=f"t{tj}")
    a.wait_lg("t0")
    for j in range(4):
        a(f"v_and_b32 v{M0F+j}, v{LD+j}, v{mk1}")
        a(f"v_and_b32 v{M0F+4+j}, v{LD+j}, v{mk0}")
    for tj in (1, 2, 3):
        a.wait_lg(f"t{tj}")
        a(f"v_mfma_f32_16x16x32_bf16 {Q(TR+4*tj)}, {Q(LD+4*tj)}, {Q(RE2)}, 0")
        a(f"v_mfma_f32_16x16x32_bf16 {Q(TI+4*tj)}, {Q(LD+4*tj)}, {Q(IM2)}, 0")
    a(f"v_mfma_f32_16x16x32_bf16 {Q(TR)}, {Q(M0F)}, {Q(RE2)}, 0")
    a(f"v_mfma_f32_16x16x32_bf16 {Q(TI)}, {Q(M0F)}, {Q(IM2)}, 0")
    a(f"v_mfma_f32_16x16x32_bf16 {Q(TR)}, {Q(M0F+4)}, {Q(SP0)}, {Q(TR)}")
    a(f"v_mfma_f32_16x16x32_bf16 {Q(TI)}, {Q(M0F+4)}, {Q(SP1)}, {Q(TI)}")
    UR = LD; UI = C8
    for tj in (1, 2, 3, 0):
        cs = TWC + tj; ss = TWS + tj
        cp = f"v[{cs & ~1}:{(cs & ~1)+1}]"; sp = f"v[{ss & ~1}:{(ss & ~1)+1}]"
        o = cs & 1
        sel2 = f"op_sel:[0,{o}] op_sel_hi:[1,{o}]"
        sel3 = f"op_sel:[0,{o},0] op_sel_hi:[1,{o},1]"
        for h in range(2):
            a(f"v_pk_mul_f32 {P(UR+4*tj+2*h)}, {P(TR+4*tj+2*h)}, {cp} {sel2}")
            a(f"v_pk_mul_f32 {P(UI+4*tj+2*h)}, {P(TI+4*tj+2*h)}, {cp} {sel2}")
        for h in range(2):
            a(f"v_pk_fma_f32 {P(UR+4*tj+2*h)}, {P(TI+4*tj+2*h)}, {sp}, {P(UR+4*tj+2*h)} {sel3} neg_lo:[1,0,0] neg_hi:[1,0,0]")
            a(f"v_pk_fma_f32 {P(UI+4*tj+2*h)}, {P(TR+4*tj+2*h)}, {sp}, {P(UI+4*tj+2*h)} {sel3}")
    FR = TR
    for i in range(4):
        a(f"v_cvt_pk_bf16_f32 v{FR+4*i}, v{UR+i}, v{UR+4+i}")
        a(f"v_cvt_pk_bf16_f32 v{FR+4*i+1}, v{UR+8+i}, v{UR+12+i}")
        a(f"v_cvt_pk_bf16_f32 v{FR+4*i+2}, v{UI+i}, v{UI+4+i}")
        a(f"v_cvt_pk_bf16_f32 v{FR+4*i+3}, v{UI+8+i}, v{UI+12+i}")
    O = TI
    def oreg(i, at):
        k = 2*i + at
        return (TI + 4*k) if k < 4 else (LD + 4*(k-4))
    for i in range(4):
        for at in range(2):
            a(f"v_mfma_f32_16x16x32_bf16 {Q(oreg(i, at))}, {Q(FR+4*i)}, {Q(B1+4*at)}, 0")
    a(f"s_add_u32 s41, s41, {XA_OFF}")
    a.wait_vm("xv")
    for i in range(4):
        for at in range(2):
            o = oreg(i, at); xv = XV + 4*i + 2*at; t = C8 + 8*(at)
            a(f"v_cvt_pk_bf16_f32 v{o}, v{o}, v{o+1}")
            a(f"v_cvt_pk_bf16_f32 v{o+1}, v{o+2}, v{o+3}")
            a(f"v_lshlrev_b32 v{t}, 16, v{o}")
            a(f"v_and_b32 v{t+1}, s{sMask}, v{o}")
            a(f"v_lshlrev_b32 v{t+2}, 16, v{o+1}")
            a(f"v_and_b32 v{t+3}, s{sMask}, v{o+1}")
            a(f"v_lshlrev_b32 v{t+4}, 16, v{xv}")
            a(f"v_and_b32 v{t+5}, s{sMask}, v{xv}")
            a(f"v_lshlrev_b32 v{t+6}, 16, v{xv+1}")
            a(f"v_and_b32 v{t+7}, s{sMask}, v{xv+1}")
            a(f"v_pk_add_f32 {P(t)}, {P(t)}, {P(t+4)}")
            a(f"v_pk_add_f32 {P(t+2)}, {P(t+2)}, {P(t+6)}")
            a(f"v_cvt_pk_bf16_f32 v{o+2}, v{t}, v{t+1}")
            a(f"v_cvt_pk_bf16_f32 v{o+3}, v{t+2}, v{t+3}")
            a(f"buffer_store_dwordx2 {P(o+2)}, v{vX}, s[24:27], s41 offen offset:{1024*i+512*at}{store_mods}", tag="xast")
    return last


def gen_k3a(a, name):
    a.raw(f".globl {name}\n.p2align 8\n.type {name},@function\n{name}:")
    a("s_cmp_gt_u32 s2, 255")
    a("s_cbranch_scc1 K3A_END")
    a("s_load_dwordx2 s[8:9], s[0:1], 0")
    a("s_load_dwordx2 s[10:11], s[0:1], 64")
    a("v_lshrrev_b32 v4, 6, v0")
    a("v_readfirstlane_b32 s3, v4")
    a("s_waitcnt lgkmcnt(0)")
    srd(a, 24, 10, 11, WS_SIZE)
    srd(a, 12, 8, 9, 2097152)
    gen_rowifft(a, 2, 3, 0, 128)
    a.label("K3A_END")
    a("s_endpgm")
    a.vm = []; a.lg = []


def gen_k3b(a, name, NSLOT=8):
    a.raw(f".globl {name}\n.p2align 8\n.type {name},@function\n{name}:")
    STG = 8192; NST = 22; NSTEP = 43
    vI, vG, vL = 1, 2, 3
    vT = 4
    vD = 12
    vR = 14
    vA = 18; vO = 19
    XA = 20
    ACC = 28
    WF = 44
    a("s_cmp_gt_u32 s2, 255")
    a("s_cbranch_scc1 K3B_END")
    a("s_load_dwordx4 s[8:11], s[0:1], 40")
    a("s_load_dwordx2 s[12:13], s[0:1], 64")
    a(f"v_lshrrev_b32 v{vT}, 6, v0")
    a(f"v_and_b32 v{vI}, 15, v0")
    a(f"v_readfirstlane_b32 s3, v{vT}")
    a(f"v_bfe_u32 v{vG}, v0, 4, 2")
    a(f"v_and_b32 v{vL}, 63, v0")
    a("s_and_b32 s30, s2, 7")
    a("s_lshr_b32 s31, s2, 3")
    a("s_lshl_b32 s30, s30, 2")
    a("s_and_b32 s32, s31, 3")
    a("s_add_u32 s30, s30, s32")
    a("s_lshr_b32 s31, s31, 2")
    a(f"v_lshrrev_b32 v{vT}, 3, v{vL}")
    a(f"v_bfe_u32 v{vT+1}, v{vL}, 4, 1")
    a(f"v_and_b32 v{vT+2}, 7, v{vL}")
    a(f"v_lshlrev_b32 v{vT+1}, 1, v{vT+1}")
    a(f"v_xor_b32 v{vT+2}, v{vT+2}, v{vT+1}")
    a(f"v_lshlrev_b32 v{vT}, 10, v{vT}")
    a("s_lshl_b32 s33, s3, 14")
    a("s_lshl_b32 s34, s31, 7")
    a("s_add_u32 s33, s33, s34")
    a(f"v_lshl_add_u32 v{vD}, v{vT+2}, 4, v{vT}")
    a(f"v_xor_b32 v{vT+2}, 4, v{vT+2}")
    a(f"v_lshl_add_u32 v{vD+1}, v{vT+2}, 4, v{vT}")
    a(f"v_add_u32 v{vD}, s33, v{vD}")
    a(f"v_add_u32 v{vD+1}, s33, v{vD+1}")
    a(f"v_add_u32 v{vD+1}, {8192-1024}, v{vD+1}")
    a("s_lshl_b32 s35, s30, 6")
    a("s_lshl_b32 s36, s3, 4")
    a("s_add_u32 s35, s35, s36")
    a("s_mul_i32 s36, s35, 2752")
    a(f"s_add_u32 s36, s36, {H_OFF}")
    a(f"v_mul_u32_u24 v{vA}, 2752, v{vI}")
    a(f"v_lshl_add_u32 v{vA}, v{vG}, 4, v{vA}")
    a("s_lshl_b32 s37, s3, 11")
    a("s_waitcnt lgkmcnt(0)")
    srd(a, 20, 8, 9, 1376*1024)
    srd(a, 24, 12, 13, WS_SIZE)
    srd(a, 16, 10, 11, 2097152)
    def dma(t):
        a(f"s_add_u32 m0, s37, {(t % NSLOT)*STG}")
        a(f"s_mov_b32 s38, {t*65536}")
        for j in range(2):
            if 64*t + 32 + 0 > 1376 - 1 and False: pass
            a(f"buffer_load_dwordx4 v{vD+j}, s[20:23], s38 offen offset:{1024*j} lds", tag=f"b{t}")
    def aload(s):
        a(f"buffer_load_dwordx4 a[{4*s}:{4*s+3}], v{vA}, s[24:27], s36 offen offset:{64*s}", tag=f"a{s}")
    issuedA = 0
    for t in range(NSLOT):
        dma(t)
        for s in (2*t, 2*t+1): aload(s); issuedA += 1
    a(f"v_and_b32 v{vT}, 1, v{vG}")
    a(f"v_lshlrev_b32 v{vT}, 5, v{vT}")
    a(f"v_lshrrev_b32 v{vT+1}, 1, v{vG}")
    a(f"v_lshl_add_u32 v{vT}, v{vT+1}, 4, v{vT}")
    a(f"v_lshl_add_u32 v{vO}, v{vI}, 10, v{vT}")
    a("s_lshl_b32 s39, s35, 10")
    a("s_add_u32 s39, s39, s34")
    a(f"s_add_u32 s40, s39, {XA_OFF}")
    a(f"v_lshrrev_b32 v{vT}, 2, v{vI}")
    a(f"v_lshl_add_u32 v{vT+1}, v{vG}, 3, v{vT}")
    a(f"v_lshlrev_b32 v{vT+1}, 7, v{vT+1}")
    a(f"v_and_b32 v{vT+2}, 3, v{vI}")
    a(f"v_lshl_add_u32 v{vT+1}, v{vT+2}, 3, v{vT+1}")
    a(f"v_lshrrev_b32 v{vT}, 1, v{vT}")
    a(f"v_and_b32 v{vT+2}, 1, v{vG}")
    a(f"v_lshl_add_u32 v{vT}, v{vT+2}, 1, v{vT}")
    for j in range(4):
        a(f"v_xor_b32 v{vT+2}, {j}, v{vT}")
        a(f"v_lshl_add_u32 v{vR+j}, v{vT+2}, 5, v{vT+1}")
    AHEAD = 24
    while issuedA < min(AHEAD, NSTEP): aload(issuedA); issuedA += 1
    def reads(t):
        st = WF + 32*(t % 2)
        for ks in range(2):
            if 2*t + ks >= NSTEP: continue
            for j in range(4):
                off = (t % NSLOT)*STG + ks*4096
                a(f"ds_read_b64_tr_b16 {P(st+16*ks+4*j)}, v{vR+j} offset:{off}", tag=f"r{t}_{ks}")
                a(f"ds_read_b64_tr_b16 {P(st+16*ks+4*j+2)}, v{vR+j} offset:{off+512}", tag=f"r{t}_{ks}")
    a.wait_vm("b0")
    a("s_barrier")
    reads(0)
    for t in range(NST):
        if t + 1 < NST:
            a.wait_lg(f"r{t}_0")
            a.wait_vm(f"b{t+1}")
            a("s_barrier")
            if t >= 1 and t - 1 + NSLOT < NST: dma(t - 1 + NSLOT)
            for _ in range(2):
                if issuedA < NSTEP: aload(issuedA); issuedA += 1
            if t == NST - 4:
                a(f"buffer_load_dwordx4 {Q(XA)}, v{vO}, s[24:27], s40 offen", tag="xa")
                a(f"buffer_load_dwordx4 {Q(XA+4)}, v{vO}, s[24:27], s40 offen offset:64", tag="xa")
        st = WF + 32*(t % 2)
        for ks in range(2):
            s = 2*t + ks
            if s >= NSTEP: continue
            a.wait_lg(f"r{t}_{ks}")
            a.wait_vm(f"a{s}")
            if ks == 0 and t + 1 < NST: reads(t + 1) if False else None
            for j in range(4):
                c = "0" if s == 0 else Q(ACC+4*j)
                a(f"v_mfma_f32_16x16x32_bf16 {Q(ACC+4*j)}, {Q(st+16*ks+4*j)}, a[{4*s}:{4*s+3}], {c}")
            if ks == 0 and t + 1 < NST:
                a.wait_lg(f"r{t}_1")
                reads(t + 1)
    a("s_mov_b32 s28, 0xffff0000")
    PKB = WF; U = WF + 8; V = WF + 24
    for j in range(8):
        a(f"v_cvt_pk_bf16_f32 v{PKB+j}, v{ACC+2*j}, v{ACC+2*j+1}")
    for p in range(2):
        a(f"v_permlane16_swap_b32 v{PKB+4*p}, v{PKB+4*p+2}")
        a(f"v_permlane16_swap_b32 v{PKB+4*p+1}, v{PKB+4*p+3}")
    a.wait_vm("xa")
    for j in range(8):
        a(f"v_lshlrev_b32 v{U+2*j}, 16, v{PKB+j}")
        a(f"v_and_b32 v{U+2*j+1}, s28, v{PKB+j}")
        a(f"v_lshlrev_b32 v{V+2*j}, 16, v{XA+j}")
        a(f"v_and_b32 v{V+2*j+1}, s28, v{XA+j}")
    for j in range(8):
        a(f"v_pk_add_f32 {P(U+2*j)}, {P(U+2*j)}, {P(V+2*j)}")
    for j in range(8):
        a(f"v_cvt_pk_bf16_f32 v{PKB+j}, v{U+2*j}, v{U+2*j+1}")
    a(f"buffer_store_dwordx4 {Q(PKB)}, v{vO}, s[16:19], s39 offen")
    a(f"buffer_store_dwordx4 {Q(PKB+4)}, v{vO}, s[16:19], s39 offen offset:64")
    a.label("K3B_END")
    a("s_endpgm")
    a.vm = []; a.lg = []
```

```python
import sys
from asmlib import *
from layout import *
import k1, k2, k3

HEADER = open("parallel_sum__spectral_gfnet__dense_activation_silu__prompt.s.ref").read().split("; Override launch")[0]

def build(path):
    parts = []; kds = []
    def one(gen, name, **kw):
        a = Asm(); gen(a, name, **kw)
        parts.append(a.text())
        acc = (a.maxv + 1 + 3) // 4 * 4
        nv = acc + a.maxa + 1 if a.maxa >= 0 else a.maxv + 1
        kds.append(kd(name, nv, max(a.maxs + 1, 16), acc))
        print(name, "vgpr", a.maxv + 1, "agpr", a.maxa + 1, "sgpr", a.maxs + 1, "lines", len(a.lines))
    one(k1.gen_k1, "k1_kernel", prefetch_bytes_expr="TEXT_END-K1_PC")
    one(k2.gen_k2, "k2_kernel")
    one(k3.gen_k3a, "k3a_kernel")
    one(k3.gen_k3b, "k3b_kernel")
    s = HEADER
    s += f"; @launch kernel=k1_kernel grid=(257,1,1) block=(512,1,1) lds={K1_LDS}\n"
    s += f"; @launch kernel=k2_kernel grid=(513,1,1) block=(256,1,1) lds=73728\n"
    s += f"; @launch kernel=k3a_kernel grid=(256,1,1) block=(128,1,1) lds=8192\n"
    s += f"; @launch kernel=k3b_kernel grid=(256,1,1) block=(256,1,1) lds=65536\n"
    s += '.amdgcn_target "amdgcn-amd-amdhsa--gfx950"\n.text\n'
    s += "".join(parts)
    s += "TEXT_END:\n"
    s += '.section .rodata,"a"\n' + "".join(kds)
    open(path, "w").write(s)

if __name__ == "__main__":
    build(sys.argv[1] if len(sys.argv) > 1 else "parallel_sum__spectral_gfnet__dense_activation_silu__prompt.s")
```

```python
import re

TRANS = ("v_exp_f32", "v_log_f32", "v_rcp_f32", "v_rsq_f32", "v_sqrt_f32", "v_sin_f32", "v_cos_f32")

def _regs(tok):
    tok = tok.strip()
    neg = tok.lstrip("-")
    m = re.fullmatch(r"abs\((.*)\)", neg)
    if m: neg = m.group(1)
    neg = neg.strip("|")
    m = re.fullmatch(r"([vas])\[(\d+):(\d+)\]", neg)
    if m:
        return [f"{m.group(1)}{i}" for i in range(int(m.group(2)), int(m.group(3)) + 1)]
    m = re.fullmatch(r"([vas])(\d+)", neg)
    if m: return [neg]
    if neg == "vcc": return ["vcc"]
    if neg == "exec": return ["exec"]
    if neg == "m0": return ["m0"]
    return []

class Ins:
    __slots__ = ("text", "op", "kind", "wr", "rd", "passes", "srcc", "ab", "dpp", "states", "storedata")

def parse(text):
    t = text.split(";")[0].strip()
    parts = t.split(None, 1)
    op = parts[0]
    rest = parts[1] if len(parts) > 1 else ""
    ops = []; cur = ""; depth = 0
    for ch in rest:
        if ch == "[": depth += 1
        if ch == "]": depth -= 1
        if ch == "," and depth == 0:
            ops.append(cur); cur = ""
        else: cur += ch
    ops.append(cur)
    mods = ""
    if ops:
        last = ops[-1].strip().split(None, 1)
        if last:
            ops[-1] = last[0]
            mods = last[1] if len(last) > 1 else ""
    I = Ins(); I.text = text; I.op = op; I.wr = []; I.rd = []; I.passes = 0; I.srcc = []; I.ab = []
    I.dpp = ("_dpp" in op) or ("quad_perm" in mods) or ("row_" in mods); I.states = 1; I.storedata = []
    R = [_regs(o) for o in ops]
    base = op.replace("_e32", "").replace("_e64", "").replace("_dpp", "").replace("_sdwa", "")
    if op.startswith("v_mfma"):
        I.kind = "mfma"; I.wr = R[0]; I.ab = R[1] + R[2]; I.srcc = R[3]; I.rd = I.ab + I.srcc
        I.passes = 4 if "16x16x32" in op else (8 if "32x32x16" in op else (2 if "4x4x4" in op else 16))
    elif op.startswith("v_"):
        I.kind = "trans" if base in TRANS else "valu"
        if base.startswith("v_cmp"):
            I.wr = R[0]; I.rd = sum(R[1:], [])
        elif base.startswith("v_permlane") and "swap" in base:
            I.kind = "permlane"; I.wr = R[0] + R[1]; I.rd = R[0] + R[1]
        elif base in ("v_readlane_b32", "v_readfirstlane_b32"):
            I.kind = "readlane"; I.wr = R[0]; I.rd = sum(R[1:], [])
        elif base in ("v_add_co_u32", "v_sub_co_u32", "v_addc_co_u32", "v_subb_co_u32"):
            I.wr = R[0] + R[1]; I.rd = sum(R[2:], [])
        else:
            I.wr = R[0]; I.rd = sum(R[1:], [])
            if base in ("v_fmac_f32", "v_dot2c_f32_bf16", "v_pk_fmac_f16") or I.dpp:
                I.rd = I.rd + R[0]
            if base == "v_cndmask_b32" and len(ops) == 3: I.rd = I.rd + ["vcc"]
    elif op.startswith("ds_"):
        I.kind = "ds"
        if op.startswith("ds_read") or op.startswith("ds_bpermute") or op.startswith("ds_swizzle"):
            I.wr = R[0]; I.rd = sum(R[1:], [])
        else:
            I.rd = sum(R, [])
    elif op.startswith("buffer_") or op.startswith("global_"):
        I.kind = "vmem"
        islds = bool(re.search(r"\blds\b", mods)) or "_lds_" in op
        if "load" in op and not islds:
            I.wr = R[0]; I.rd = sum(R[1:], [])
        elif "atomic" in op and "sc0" in mods:
            I.wr = R[0]; I.rd = sum(R, [])
        else:
            I.rd = sum(R, [])
            if islds: I.rd = I.rd + ["m0"]; I.kind = "vmemlds"
            if "store" in op and ("x4" in op or "x3" in op):
                I.storedata = R[0] if op.startswith("buffer_") else R[1]
    elif op.startswith("s_"):
        I.kind = "salu"
        if op == "s_nop":
            I.states = int(ops[0]) + 1
        elif op.startswith("s_cmp") or op.startswith("s_cbranch") or op in ("s_waitcnt", "s_barrier", "s_branch", "s_endpgm", "s_setprio", "s_sleep"):
            I.rd = sum(R, [])
        else:
            I.wr = R[0]; I.rd = sum(R[1:], [])
    else:
        raise ValueError("unknown op " + text)
    return I

def need(p, c):
    n = 0
    pw = set(p.wr); cr = set(c.rd); cw = set(c.wr)
    pv = p.kind in ("valu", "trans", "permlane")
    cvalu = c.kind in ("valu", "trans", "permlane", "readlane")
    if pv:
        vw = {r for r in pw if r[0] in "va" and r != "vcc"}
        if c.kind == "mfma" and vw & cr: n = max(n, 2)
        if c.dpp and cvalu and vw & cr: n = max(n, 2)
        if c.kind == "readlane" and vw & cr: n = max(n, 1)
        if c.kind == "permlane" and vw & cr: n = max(n, 2)
        if p.kind == "trans" and cvalu and c.kind != "trans" and vw & cr: n = max(n, 1)
    if p.kind in ("valu", "readlane", "trans"):
        sw = {r for r in pw if r[0] == "s" or r == "vcc"}
        if sw & cr:
            if cvalu: n = max(n, 4 if c.kind == "readlane" else 2)
            if c.kind in ("vmem", "vmemlds"): n = max(n, 5)
            if c.kind == "salu": n = max(n, 1)
    if p.kind == "salu" and "m0" in pw and c.kind == "vmemlds": n = max(n, 1)
    if p.kind == "mfma":
        P = p.passes
        tabA = {2: 5, 4: 8, 8: 12, 16: 20}[P]
        if c.kind == "mfma":
            if pw & set(c.ab): n = max(n, tabA)
            if pw & set(c.srcc):
                if list(p.wr) == list(c.srcc) and c.passes == P: n = max(n, 2 if P == 2 else 0)
                else: n = max(n, {2: 4, 4: 6, 8: 10, 16: 18}[P])
            elif pw & cw: n = max(n, tabA)
        else:
            if pw & (cr | cw): n = max(n, tabA)
        if cvalu and set(p.srcc) & cw: n = max(n, {2: 1, 4: 3, 8: 7, 16: 15}[P])
    if p.storedata and set(p.storedata) & cw: n = max(n, 2)
    return n

class Asm:
    def __init__(self):
        self.lines = []
        self.hist = []
        self.vm = []
        self.lg = []
        self.nbytes = 0
        self.maxv = -1; self.maxa = -1; self.maxs = -1
    def raw(self, text):
        self.lines.append(text)
    def comment(self, t): self.lines.append("    ; " + t)
    def label(self, name):
        self.flush()
        self.lines.append(name + ":")
    def flush(self, n=None):
        req = 0; dist = 0
        for p in reversed(self.hist):
            worst = 0
            if p.kind == "mfma": worst = {2: 5, 4: 8, 8: 12, 16: 20}[p.passes]
            elif p.kind in ("valu", "trans", "permlane", "readlane"): worst = 5 if any(r[0] == "s" or r == "vcc" for r in p.wr) else 2
            elif p.storedata: worst = 2
            elif p.kind == "salu" and "m0" in p.wr: worst = 1
            req = max(req, worst - dist)
            dist += p.states
            if dist > 24: break
        if req > 0: self.nop(req)
        self.hist = []
    def nop(self, states):
        while states > 0:
            k = min(states, 16)
            self._put(parse(f"s_nop {k-1}"))
            states -= k
    def _put(self, I):
        self.lines.append("    " + I.text)
        self.hist.append(I)
        if len(self.hist) > 40: self.hist = self.hist[-40:]
        for r in I.wr + I.rd:
            if r[0] == "v" and r != "vcc": self.maxv = max(self.maxv, int(r[1:]))
            elif r[0] == "a": self.maxa = max(self.maxa, int(r[1:]))
            elif r[0] == "s": self.maxs = max(self.maxs, int(r[1:]))
    DROP = ()
    def __call__(self, text, tag=None):
        if Asm.DROP and any(text.startswith(d) for d in Asm.DROP) and getattr(self, "dropping", False): return
        I = parse(text)
        req = 0; dist = 0
        for p in reversed(self.hist):
            req = max(req, need(p, I) - dist)
            dist += p.states
            if dist > 24: break
        if req > 0: self.nop(req)
        self._put(I)
        if I.kind in ("vmem", "vmemlds"): self.vm.append(tag)
        if I.kind == "ds": self.lg.append(tag)
        return I
    def wait_vm(self, *tags):
        idx = [i for i, t in enumerate(self.vm) if t in tags]
        if not idx: return
        last = max(idx)
        n = len(self.vm) - 1 - last
        assert n <= 63, "vmcnt overflow"
        self(f"s_waitcnt vmcnt({n})")
        self.vm = self.vm[last + 1:]
    def wait_lg(self, *tags):
        idx = [i for i, t in enumerate(self.lg) if t in tags]
        if not idx: return
        last = max(idx)
        n = len(self.lg) - 1 - last
        n = min(n, 15)
        self(f"s_waitcnt lgkmcnt({n})")
        self.lg = self.lg[len(self.lg) - n:] if n else []
    def wait_all(self, vm=True, lg=True):
        s = "s_waitcnt"
        if vm: s += " vmcnt(0)"; self.vm = []
        if lg: s += " lgkmcnt(0)"; self.lg = []
        self(s)
    STAMP = False
    def stamp(self, i, real=False):
        if not Asm.STAMP: return
        self(f"{'s_memrealtime' if real else 's_memtime'} s[{64+2*i}:{65+2*i}]")
        self("s_waitcnt lgkmcnt(0)"); self.lg = []
    def stamp_flush(self, n, kidx, vtmp=1):
        if not Asm.STAMP: return
        self(f"v_mov_b32 v{vtmp}, 0")
        for i in range(n):
            self(f"v_writelane_b32 v{vtmp}, s{64+2*i}, {i}")
        self(f"v_and_b32 v{vtmp+1}, 63, v0")
        self(f"v_lshlrev_b32 v{vtmp+1}, 2, v{vtmp+1}")
        self("s_lshl_b32 s59, s2, 3")
        self("s_add_u32 s59, s59, s3")
        self("s_lshl_b32 s59, s59, 8")
        self(f"s_add_u32 s59, s59, {(32+kidx) << 20}")
        self(f"buffer_store_dword v{vtmp}, v{vtmp+1}, s[24:27], s59 offen")
    def text(self): return "\n".join(self.lines) + "\n"

def kd(name, vgpr, sgpr, accum, extra=""):
    return f""".p2align 6
.amdhsa_kernel {name}
  .amdhsa_next_free_vgpr {vgpr}
  .amdhsa_next_free_sgpr {sgpr}
  .amdhsa_accum_offset {accum}
  .amdhsa_group_segment_fixed_size 0
  .amdhsa_kernarg_size 72
  .amdhsa_user_sgpr_count 2
  .amdhsa_user_sgpr_kernarg_segment_ptr 1
  .amdhsa_system_sgpr_workgroup_id_x 1
{extra}.end_amdhsa_kernel
"""
```

```python
from asmlib import *
from layout import *

def f32hex(x):
    import struct
    return "0x%08x" % struct.unpack("<I", struct.pack("<f", x))[0]

def srd(a, s, lo, hi, size):
    a(f"s_mov_b32 s{s}, s{lo}")
    a(f"s_mov_b32 s{s+1}, s{hi}")
    a(f"s_mov_b32 s{s+2}, {size}")
    a(f"s_mov_b32 s{s+3}, 0x20000")

def wave_reduce(a, t):
    a(f"v_add_f32_dpp v{t}, v{t}, v{t} quad_perm:[1,0,3,2] row_mask:0xf bank_mask:0xf")
    a(f"v_add_f32_dpp v{t}, v{t}, v{t} quad_perm:[2,3,0,1] row_mask:0xf bank_mask:0xf")
    a(f"v_add_f32_dpp v{t}, v{t}, v{t} row_half_mirror row_mask:0xf bank_mask:0xf")
    a(f"v_add_f32_dpp v{t}, v{t}, v{t} row_mirror row_mask:0xf bank_mask:0xf")
    a(f"v_add_f32_dpp v{t}, v{t}, v{t} row_bcast:15 row_mask:0xa bank_mask:0xf")
    a(f"v_add_f32_dpp v{t}, v{t}, v{t} row_bcast:31 row_mask:0xc bank_mask:0xf")

def P(r): return f"v[{r}:{r+1}]"
def Q(r): return f"v[{r}:{r+3}]"

def gen_k1(a, name, prefetch_bytes_expr=None):
    a.raw(f".globl {name}\n.p2align 8\n.type {name},@function\n{name}:")
    vL, vN, vG = 1, 2, 3
    vT = 4
    X = 12
    F = 16
    D = 24
    WR = 32; WI = 36
    T0 = 40; T1 = 44
    TWC = 48; TWS = 52
    RE = 56; IM = 60; SP0 = 64; SP1 = 68
    MK0 = 72; MK1 = 73
    OA = 74
    vWin = 78; vWout = 79; vTr = 80; vPf = 82
    AF = 84
    U0 = 88; U1 = 92
    B1 = 96; B0 = 100
    DR = 104; DI = 108
    vXN = 81; vC = 128
    C8 = 112; S8 = 120
    sW = 3; sMask = 28; sSign = 29
    a.stamp(0, True); a.stamp(1)
    a("s_cmp_gt_u32 s2, 255")
    a("s_cbranch_scc1 K1_END")
    a("s_load_dwordx4 s[4:7], s[0:1], 0")
    a("s_load_dwordx2 s[8:9], s[0:1], 16")
    a("s_load_dwordx2 s[10:11], s[0:1], 64")
    a("s_load_dwordx2 s[60:61], s[0:1], 32")
    if prefetch_bytes_expr:
        a("s_getpc_b64 s[30:31]")
        a.raw("K1_PC:")
        a("s_lshr_b32 s32, s2, 3")
        a("s_and_b32 s32, s32, 15")
        a("s_lshl_b32 s32, s32, 11")
        a(f"v_lshl_add_u32 v{vT}, v0, 2, s32")
        a(f"v_cmp_gt_u32 vcc, {prefetch_bytes_expr}, v{vT}")
        a(f"v_mov_b32 v{vPf+1}, s31")
        a(f"v_cndmask_b32 v{vT}, 0, v{vT}, vcc")
        a(f"v_add_co_u32 v{vPf}, vcc, s30, v{vT}")
        a(f"v_addc_co_u32 v{vPf+1}, vcc, 0, v{vPf+1}, vcc")
        a(f"global_load_dword v{vPf}, v[{vPf}:{vPf+1}], off", tag="pf")
    a(f"v_lshrrev_b32 v{vT}, 6, v0")
    a(f"v_and_b32 v{vL}, 63, v0")
    a(f"v_readfirstlane_b32 s{sW}, v{vT}")
    a(f"v_and_b32 v{vN}, 15, v0")
    a(f"v_bfe_u32 v{vG}, v0, 4, 2")
    a(f"s_mov_b32 s{sMask}, 0xffff0000")
    a(f"s_mov_b32 s{sSign}, 0x80008000")
    a("s_mov_b32 s47, 0xbc003c00")
    a("s_and_b32 s33, s2, 7")
    a("s_lshl_b32 s33, s33, 1")
    a("s_bfe_u32 s34, s2, 0x10003")
    a("s_add_u32 s33, s33, s34")
    a("s_lshr_b32 s34, s2, 4")
    a("s_lshl_b32 s35, s33, 7")
    a(f"s_and_b32 s36, s{sW}, 3")
    a("s_lshl_b32 s36, s36, 5")
    a("s_add_u32 s35, s35, s36")
    a(f"s_lshr_b32 s36, s{sW}, 2")
    a("s_add_u32 s35, s35, s36")
    a("s_lshl_b32 s36, s34, 1")
    a("s_add_u32 s35, s35, s36")
    a("s_lshl_b32 s35, s35, 10")
    a("s_lshl_b32 s56, s33, 3")
    a("s_lshr_b32 s57, s34, 1")
    a("s_add_u32 s56, s56, s57")
    a("s_lshl_b32 s56, s56, 14")
    a("s_and_b32 s57, s34, 1")
    a("s_lshl_b32 s57, s57, 3")
    a(f"s_add_u32 s57, s57, s{sW}")
    a("s_lshl_b32 s57, s57, 4")
    a("s_add_u32 s56, s56, s57")
    if XN_OFF: a(f"s_add_u32 s56, s56, {XN_OFF}")
    a(f"v_lshlrev_b32 v{vXN}, 8, v{vL}")
    a(f"v_lshlrev_b32 v{vT+1}, 4, v{vL}")
    a(f"s_and_b32 s37, s{sW}, 3")
    a(f"s_lshr_b32 s38, s{sW}, 2")
    a("s_lshl_b32 s39, s38, 2")
    a("s_add_u32 s39, s39, s37")
    a(f"s_mul_i32 s40, s39, {4*64*514}")
    a("s_lshl_b32 s41, s37, 8")
    a("s_lshl_b32 s42, s38, 10")
    a("s_add_u32 s41, s41, s42")
    a(f"s_add_u32 s41, s41, {WT_OFF}")
    a("s_and_b32 s42, s2, 7")
    a("s_lshl_b32 s42, s42, 3")
    a("s_bfe_u32 s43, s2, 0x30003")
    a("s_add_u32 s42, s42, s43")
    a("s_lshr_b32 s43, s2, 6")
    a("s_mul_i32 s44, s42, 514")
    a("s_lshl_b32 s45, s43, 7")
    a("s_add_u32 s44, s44, s45")
    a("s_add_u32 s40, s40, s44")
    a("s_lshl_b32 s44, s43, 19")
    a("s_add_u32 s41, s41, s44")
    a("s_lshr_b32 s44, s42, 4")
    a("s_lshl_b32 s44, s44, 11")
    a("s_add_u32 s41, s41, s44")
    a("s_and_b32 s44, s42, 15")
    a("s_lshl_b32 s44, s44, 4")
    a("s_add_u32 s41, s41, s44")
    a(f"v_lshlrev_b32 v{vWin}, 1, v{vL}")
    a(f"v_lshlrev_b32 v{vWout}, 13, v{vL}")
    a("s_mov_b32 s45, s43")
    a("s_add_u32 s42, s40, 32896")
    a("s_add_u32 s43, s40, 65792")
    a("s_add_u32 s44, s40, 98688")
    a("s_waitcnt lgkmcnt(0)")
    a.stamp(2)
    srd(a, 12, 4, 5, 2097152)
    a(f"buffer_load_dwordx4 {Q(X)}, v{vT+1}, s[12:15], s35 offen", tag="x")
    srd(a, 16, 6, 7, 2048*514)
    srd(a, 20, 8, 9, 2048*514)
    srd(a, 24, 10, 11, WS_SIZE)
    for r, so in enumerate((40, 42, 43, 44)):
        a(f"buffer_load_ushort v{WR+r}, v{vWin}, s[16:19], s{so} offen", tag="w")
        a(f"buffer_load_ushort v{WI+r}, v{vWin}, s[20:23], s{so} offen", tag="w")
    a(f"v_and_b32 v{vC}, 3, v{vL}")
    a(f"v_mul_u32_u24 v{vC+1}, 32896, v{vC}")
    a(f"v_lshlrev_b32 v{vC}, 2, v{vC}")
    a("s_cmp_lg_u32 s45, 3")
    a("s_cbranch_scc1 K1_NOC")
    a(f"buffer_load_ushort v{vC+2}, v{vC+1}, s[16:19], s40 offen offset:128")
    a(f"buffer_load_ushort v{vC+3}, v{vC+1}, s[20:23], s40 offen offset:128")
    a("s_branch K1_NOC2")
    a.label("K1_NOC")
    a(f"buffer_load_ushort v{vC+2}, v{vC+1}, s[16:19], s40 offen", tag="w")
    a(f"buffer_load_ushort v{vC+3}, v{vC+1}, s[20:23], s40 offen", tag="w")
    a.vm = a.vm[:-4] + ["w", "w"]
    a.label("K1_NOC2")
    a("s_barrier")
    a("s_mov_b32 s62, 512*2752")
    a("s_mov_b32 s63, 0x20000")
    a("s_lshr_b32 s58, s2, 3")
    a("s_mul_i32 s58, s58, 44032")
    a(f"v_lshlrev_b32 v{vPf+1}, 7, v0")
    a(f"v_min_u32 v{vPf+1}, 43904, v{vPf+1}")
    a(f"buffer_load_dword v{vPf+1}, v{vPf+1}, s[60:63], s58 offen", tag="pf")
    fn, fg, al, ph = vT+2, vT+3, vT+4, vT+5
    a(f"v_cvt_f32_u32 v{fn}, v{vN}")
    a(f"v_cvt_f32_u32 v{fg}, v{vG}")
    a(f"v_cmp_ne_u32 vcc, 0, v{vN}")
    a(f"v_mul_f32 v{al}, {f32hex(1/32)}, v{fn}")
    a(f"v_mul_f32 v{ph}, v{al}, v{fg}")
    a(f"v_mul_f32 v{ph}, {f32hex(8.0)}, v{ph}")
    a(f"v_cndmask_b32 v{MK1}, 0, -1, vcc")
    a(f"v_cndmask_b32 v{MK0}, -1, 0, vcc")
    for e in range(8):
        a(f"v_cos_f32 v{C8+e}, v{ph}")
        a(f"v_sin_f32 v{S8+e}, v{ph}")
        if e < 7: a(f"v_add_f32 v{ph}, v{ph}, v{al}")
    for j in range(4):
        a(f"v_cvt_pk_f16_f32 v{T0+j}, v{C8+2*j}, v{C8+2*j+1}")
        a(f"v_cvt_pk_f16_f32 v{T1+j}, -v{S8+2*j}, -v{S8+2*j+1}")
    for j in range(4):
        a(f"v_bfi_b32 v{T1+j}, v{MK1}, v{T1+j}, s47")
    a(f"v_mul_f32 v{al}, {f32hex(1/512)}, v{fn}")
    a(f"v_mul_f32 v{ph}, v{al}, v{fg}")
    a(f"v_mul_f32 v{ph}, 4.0, v{ph}")
    p2 = vT+6
    for r in range(4):
        a(f"v_cos_f32 v{TWC+r}, v{ph}")
        a(f"v_sin_f32 v{TWS+r}, v{ph}")
        a(f"v_mul_f32 v{p2}, {f32hex(32.0)}, v{ph}")
        if r < 3: a(f"v_add_f32 v{ph}, v{ph}, v{al}")
        a(f"v_cos_f32 v{C8+r}, v{p2}")
        a(f"v_sin_f32 v{S8+r}, v{p2}")
    a(f"v_cmp_gt_u32 vcc, 8, v{vN}")
    a(f"v_mul_f32 v{al}, {f32hex(1/16)}, v{fn}")
    a(f"v_subrev_f32 v{p2}, {f32hex(15/32)}, v{al}")
    a(f"v_cndmask_b32 v{al}, v{p2}, v{al}, vcc")
    lo, hi, sg, ng = vT+7, vT+6, vT+5, vT+2
    ph2 = D
    a(f"v_mul_f32 v{ph2}, v{al}, v{fg}")
    a(f"v_mul_f32 v{ph2}, 4.0, v{ph2}")
    for r in range(4):
        a(f"v_cos_f32 v{C8+4+r}, v{ph2}")
        a(f"v_sin_f32 v{S8+4+r}, v{ph2}")
        if r < 3: a(f"v_add_f32 v{ph2}, v{ph2}, v{al}")
    a(f"v_cndmask_b32 v{lo}, 0, -1, vcc")
    a(f"v_cndmask_b32 v{hi}, -1, 0, vcc")
    a(f"v_and_b32 v{sg}, s{sSign}, v{hi}")
    a(f"v_xor_b32 v{ng}, s{sSign}, v{sg}")
    a(f"v_cvt_pk_f16_f32 v{RE}, v{C8}, v{C8+1}")
    a(f"v_cvt_pk_f16_f32 v{RE+1}, v{C8+2}, v{C8+3}")
    a(f"v_cvt_pk_f16_f32 v{RE+2}, v{S8}, v{S8+1}")
    a(f"v_cvt_pk_f16_f32 v{RE+3}, v{S8+2}, v{S8+3}")
    a(f"v_xor_b32 v{IM}, v{RE+2}, v{ng}")
    a(f"v_xor_b32 v{IM+1}, v{RE+3}, v{ng}")
    a(f"v_xor_b32 v{IM+2}, v{RE}, v{sg}")
    a(f"v_xor_b32 v{IM+3}, v{RE+1}, v{sg}")
    x0, x1, y0, y1 = D+1, D+2, D+3, D+4
    a(f"v_cvt_pk_f16_f32 v{x0}, v{C8+4}, v{C8+5}")
    a(f"v_cvt_pk_f16_f32 v{x1}, v{C8+6}, v{C8+7}")
    a(f"v_cvt_pk_f16_f32 v{y0}, -v{S8+4}, -v{S8+5}")
    a(f"v_cvt_pk_f16_f32 v{y1}, -v{S8+6}, -v{S8+7}")
    a(f"v_cmp_ne_u32 vcc, 0, v{vN}")
    a(f"v_bfi_b32 v{y0}, v{MK1}, v{y0}, s47")
    a(f"v_bfi_b32 v{y1}, v{MK1}, v{y1}, s47")
    for dst, s0, s1 in ((SP0, x0, x1), (SP1, y0, y1)):
        a(f"v_and_b32 v{dst}, v{s0}, v{lo}")
        a(f"v_and_b32 v{dst+1}, v{s1}, v{lo}")
        a(f"v_and_b32 v{dst+2}, v{s0}, v{hi}")
        a(f"v_and_b32 v{dst+3}, v{s1}, v{hi}")
    cA, cB, cC, st = vT+2, vT+3, vT+4, vT+5
    a(f"v_lshl_add_u32 v{cA}, v{vG}, 7, v{vN}")
    a(f"v_sub_u32 v{cB}, 512, v{cA}")
    a(f"v_subrev_u32 v{cC}, 240, v{cA}")
    a(f"v_cndmask_b32 v{cB}, v{cC}, v{cB}, vcc")
    a(f"v_mov_b32 v{cC}, 1152")
    a(f"v_cndmask_b32 v{st}, v{cC}, v{st}, vcc") if False else None
    a(f"v_sub_u32 v{st}, 0, v{cC}")
    a(f"v_cndmask_b32 v{st}, v{cC}, v{st}, vcc")
    a(f"v_cmp_gt_u32 vcc, 2, v{vG}")
    a(f"s_lshl_b32 s49, s{sW}, 2")
    a(f"s_add_u32 s49, s49, {K1_OUT}")
    a(f"v_cndmask_b32 v{cB}, v{cB}, v{cA}, vcc")
    a(f"v_cndmask_b32 v{st}, v{st}, v{cC}, vcc")
    a(f"v_mad_u32_u24 v{OA}, v{cB}, 36, s49")
    a(f"v_add_u32 v{OA+1}, v{OA}, v{st}")
    a(f"v_add_u32 v{OA+2}, v{OA+1}, v{st}")
    a(f"v_add_u32 v{OA+3}, v{OA+2}, v{st}")
    a(f"s_lshl_b32 s46, s{sW}, 10")
    vWr = vT+6
    a(f"v_add_u32 v{vWr}, s46, v{vT+1}")
    a(f"v_lshlrev_b32 v{vTr}, 8, v{vG}")
    a(f"v_lshl_add_u32 v{vTr}, v{vN}, 3, v{vTr}")
    a(f"v_add_u32 v{vTr}, s46, v{vTr}")
    a.stamp(3)
    a.wait_vm("x")
    a.stamp(4)
    for j in range(4):
        a(f"v_lshlrev_b32 v{F+2*j}, 16, v{X+j}")
        a(f"v_and_b32 v{F+2*j+1}, s{sMask}, v{X+j}")
    a(f"v_pk_add_f32 {P(D)}, {P(F)}, {P(F+2)}")
    a(f"v_pk_add_f32 {P(D+2)}, {P(F+4)}, {P(F+6)}")
    a(f"v_pk_add_f32 {P(D)}, {P(D)}, {P(D+2)}")
    t = vT+2; u = vT+3
    a(f"v_add_f32 v{t}, v{D}, v{D+1}")
    wave_reduce(a, t)
    a(f"v_mul_f32 v{t}, {f32hex(1/512)}, v{t}")
    a(f"v_cvt_pk_bf16_f32 v{u}, v{t}, v{t}")
    a(f"v_readlane_b32 s48, v{t}, 63")
    a(f"v_lshlrev_b32 v{u}, 16, v{u}")
    a(f"v_readlane_b32 s50, v{u}, 63")
    bc = "op_sel_hi:[1,0] neg_lo:[0,1] neg_hi:[0,1]"
    for j in range(4):
        a(f"v_pk_add_f32 {P(D+2*j)}, {P(F+2*j)}, s[48:49] {bc}")
    acc = C8
    a(f"v_pk_mul_f32 {P(acc)}, {P(D)}, {P(D)}")
    a(f"v_pk_mul_f32 {P(acc+2)}, {P(D+2)}, {P(D+2)}")
    a(f"v_pk_fma_f32 {P(acc)}, {P(D+4)}, {P(D+4)}, {P(acc)}")
    a(f"v_pk_fma_f32 {P(acc+2)}, {P(D+6)}, {P(D+6)}, {P(acc+2)}")
    a(f"v_pk_add_f32 {P(acc)}, {P(acc)}, {P(acc+2)}")
    a(f"v_add_f32 v{t}, v{acc}, v{acc+1}")
    for j in range(4):
        a(f"v_pk_add_f32 {P(D+2*j)}, {P(F+2*j)}, s[50:51] {bc}")
    wave_reduce(a, t)
    for j in range(4):
        a(f"v_cvt_pk_bf16_f32 v{X+j}, v{D+2*j}, v{D+2*j+1}")
    a(f"v_mul_f32 v{t}, {f32hex(1/512)}, v{t}")
    a(f"v_cvt_pk_bf16_f32 v{t}, v{t}, v{t}")
    a(f"v_lshlrev_b32 v{t}, 16, v{t}")
    a(f"v_add_f32 v{t}, {f32hex(1e-5)}, v{t}")
    a(f"v_cvt_pk_bf16_f32 v{t}, v{t}, v{t}")
    a(f"v_lshlrev_b32 v{t}, 16, v{t}")
    a(f"v_sqrt_f32 v{t}, v{t}")
    for j in range(4):
        a(f"v_lshlrev_b32 v{F+2*j}, 16, v{X+j}")
        a(f"v_and_b32 v{F+2*j+1}, s{sMask}, v{X+j}")
    a(f"v_cvt_pk_bf16_f32 v{t}, v{t}, v{t}")
    a(f"v_lshlrev_b32 v{t}, 16, v{t}")
    a(f"v_rcp_f32 v{u}, v{t}")
    a(f"v_readlane_b32 s52, v{t}, 63")
    a(f"v_readlane_b32 s54, v{u}, 63")
    b1 = "op_sel_hi:[1,0]"
    for j in range(4):
        a(f"v_pk_mul_f32 {P(D+2*j)}, {P(F+2*j)}, s[54:55] {b1}")
    for j in range(4):
        a(f"v_pk_fma_f32 {P(F+2*j)}, {P(D+2*j)}, s[52:53], {P(F+2*j)} op_sel_hi:[1,0,1] neg_lo:[1,0,0] neg_hi:[1,0,0]")
    for j in range(4):
        a(f"v_pk_fma_f32 {P(D+2*j)}, {P(F+2*j)}, s[54:55], {P(D+2*j)} op_sel_hi:[1,0,1]")
    for j in range(4):
        a(f"v_cvt_pk_bf16_f32 v{X+j}, v{D+2*j}, v{D+2*j+1}")
    for j in range(4):
        a(f"v_lshlrev_b32 v{F+2*j}, 16, v{X+j}")
        a(f"v_and_b32 v{F+2*j+1}, s{sMask}, v{X+j}")
    for j in range(4):
        a(f"v_cvt_pkrtz_f16_f32 v{D+j}, v{F+2*j}, v{F+2*j+1}")
    a(f"ds_write_b128 v{vWr}, {Q(D)}", tag="xw")
    a(f"buffer_store_dwordx4 {Q(X)}, v{vXN}, s[24:27], s56 offen", tag="st")
    a.wait_lg("xw")
    a(f"ds_read_b64_tr_b16 {P(AF)}, v{vTr}", tag="af")
    a(f"ds_read_b64_tr_b16 {P(AF+2)}, v{vTr} offset:128", tag="af")
    a.stamp(5)
    a.wait_vm("w")
    a.stamp(6)
    for r in range(4):
        a(f"v_lshl_or_b32 v{WR+r}, v{WI+r}, 16, v{WR+r}")
    a(f"buffer_store_dwordx4 {Q(WR)}, v{vWout}, s[24:27], s41 offen", tag="st")
    a("s_cmp_lg_u32 s45, 3")
    a("s_cbranch_scc1 K1_NOC3")
    a(f"v_lshl_or_b32 v{vC+2}, v{vC+3}, 16, v{vC+2}")
    a(f"s_add_u32 s41, s41, {64*8192}")
    a(f"buffer_store_dword v{vC+2}, v{vC}, s[24:27], s41 offen")
    a.vm = a.vm[:-1]
    a.label("K1_NOC3")
    a.wait_lg("af")
    a(f"v_mfma_f32_16x16x32_f16 {Q(U0)}, {Q(AF)}, {Q(T0)}, 0")
    a(f"v_mfma_f32_16x16x32_f16 {Q(U1)}, {Q(AF)}, {Q(T1)}, 0")
    for h in range(2):
        a(f"v_pk_mul_f32 {P(F+2*h)}, {P(U0+2*h)}, {P(TWC+2*h)}")
        a(f"v_pk_mul_f32 {P(F+4+2*h)}, {P(U1+2*h)}, {P(TWC+2*h)}")
    for h in range(2):
        a(f"v_pk_fma_f32 {P(F+2*h)}, {P(U1+2*h)}, {P(TWS+2*h)}, {P(F+2*h)}")
        a(f"v_pk_fma_f32 {P(F+4+2*h)}, {P(U0+2*h)}, {P(TWS+2*h)}, {P(F+4+2*h)} neg_lo:[1,0,0] neg_hi:[1,0,0]")
    for j in range(4):
        a(f"v_cvt_pk_f16_f32 v{D+j}, v{F+2*j}, v{F+2*j+1}")
    for j in range(4):
        a(f"v_and_b32 v{B1+j}, v{D+j}, v{MK1}")
    for j in range(4):
        a(f"v_and_b32 v{B0+j}, v{D+j}, v{MK0}")
    a(f"v_mfma_f32_16x16x32_f16 {Q(DR)}, {Q(RE)}, {Q(B1)}, 0")
    a(f"v_mfma_f32_16x16x32_f16 {Q(DI)}, {Q(IM)}, {Q(B1)}, 0")
    a(f"v_mfma_f32_16x16x32_f16 {Q(DR)}, {Q(SP0)}, {Q(B0)}, {Q(DR)}")
    a(f"v_mfma_f32_16x16x32_f16 {Q(DI)}, {Q(SP1)}, {Q(B0)}, {Q(DI)}")
    rd, go = vT+2, vT+3
    a(f"v_lshrrev_b32 v{rd}, 1, v0")
    a(f"v_and_b32 v{go}, 1, v0")
    a(f"v_lshlrev_b32 v{go}, 4, v{go}")
    a(f"v_lshl_add_u32 v{vT+4}, v{rd}, 13, v{go}")
    a(f"v_mad_u32_u24 v{rd}, v{rd}, 36, v{go}")
    a("s_lshl_b32 s33, s33, 8")
    a("s_lshr_b32 s36, s34, 3")
    a("s_lshl_b32 s36, s36, 12")
    a("s_add_u32 s33, s33, s36")
    a("s_and_b32 s34, s34, 7")
    a("s_lshl_b32 s34, s34, 5")
    a("s_add_u32 s33, s33, s34")
    a(f"s_add_u32 s33, s33, {XT_OFF}")
    for r in range(4):
        a(f"v_cvt_pk_f16_f32 v{D+r}, v{DR+r}, v{DI+r}")
    for r in range(4):
        a(f"ds_write_b32 v{OA+r}, v{D+r}", tag="ow")
    a.wait_lg("ow")
    a("s_barrier")
    a(f"ds_read2_b32 {P(F)}, v{rd} offset0:{K1_OUT//4 % 256 if False else 0} offset1:1", tag="or") if False else None
    a(f"v_add_u32 v{rd}, {K1_OUT}, v{rd}")
    a(f"ds_read2_b32 {P(F)}, v{rd} offset0:0 offset1:1", tag="or")
    a(f"ds_read2_b32 {P(F+2)}, v{rd} offset0:2 offset1:3", tag="or")
    a.wait_lg("or")
    a(f"buffer_store_dwordx4 {Q(F)}, v{vT+4}, s[24:27], s33 offen", tag="st")
    a.stamp(7)
    if Asm.STAMP: a("s_waitcnt vmcnt(0)")
    a.stamp(8); a.stamp(9, True)
    a.stamp_flush(10, 0, 40)
    a("s_endpgm")
    a.label("K1_END")
    a("s_endpgm")
    a.vm = []; a.lg = []
```

```python
from asmlib import *
from layout import *
from k1 import f32hex, srd, P, Q

def cmul_pairs(a, ore, oim, re, im, c, s, n, conj):
    for h in range(0, n, 2):
        a(f"v_pk_mul_f32 {P(ore+h)}, {P(re+h)}, {P(c+h)}")
        a(f"v_pk_mul_f32 {P(oim+h)}, {P(im+h)}, {P(c+h)}")
    ng = " neg_lo:[1,0,0] neg_hi:[1,0,0]"
    for h in range(0, n, 2):
        a(f"v_pk_fma_f32 {P(ore+h)}, {P(im+h)}, {P(s+h)}, {P(ore+h)}" + ("" if conj else ng))
        a(f"v_pk_fma_f32 {P(oim+h)}, {P(re+h)}, {P(s+h)}, {P(oim+h)}" + (ng if conj else ""))

def gen_fft_role(a, sCol):
    vI, vG, vL = 1, 2, 3
    vT = 4
    XF = 16
    CA = 48
    CAI = 80
    CB = 104
    CBI = 128
    TW1C = 152; TW1S = 160
    TW2C = 168; TW2S = 176
    WP = 184
    AC = 192
    AD = 208
    PK = 224
    PF = 248
    WU = 232
    sSign = 29; sMask = 28
    a(f"v_and_b32 v{vI}, 15, v0")
    a(f"v_bfe_u32 v{vG}, v0, 4, 2")
    a(f"v_and_b32 v{vL}, 63, v0")
    a(f"s_and_b32 s40, s{sCol}, 255")
    a("s_lshl_b32 s40, s40, 13")
    a(f"s_add_u32 s41, s40, {XT_OFF}")
    a(f"s_add_u32 s42, s40, {XT_OFF+4096}")
    a(f"s_lshl_b32 s43, s{sCol}, 13")
    a("s_lshl_b32 s44, s3, 11")
    a("s_add_u32 s43, s43, s44")
    a(f"s_add_u32 s43, s43, {WT_OFF}")
    a(f"v_lshlrev_b32 v{vT}, 4, v{vL}")
    for mt in range(2):
        for t in range(4):
            a(f"buffer_load_dwordx4 {Q(XF+16*mt+4*t)}, v{vT}, s[24:27], s{41+mt} offen offset:{1024*t}", tag=f"x{t}")
    a(f"buffer_load_dwordx4 {Q(WP)}, v{vT}, s[24:27], s43 offen", tag="w")
    a(f"buffer_load_dwordx4 {Q(WP+4)}, v{vT}, s[24:27], s43 offen offset:1024", tag="w")
    a(f"s_lshr_b32 s48, s{sCol}, 3")
    a("s_mul_i32 s48, s48, 44032")
    w2_pf_piece(a, 0, sCol, PF)
    a(f"s_mov_b32 s{sMask}, 0xffff0000")
    a(f"s_mov_b32 s{sSign}, 0x80008000")
    fi, fg, fk, al, ph, p2, a16 = vT+2, vT+3, vT+4, vT+5, vT+6, vT+7, vT+8
    a("s_lshl_b32 s45, s3, 4")
    a(f"v_add_u32 v{fk}, s45, v{vI}")
    a(f"v_cvt_f32_u32 v{fi}, v{vI}")
    a(f"v_cvt_f32_u32 v{fg}, v{vG}")
    a(f"v_cvt_f32_u32 v{fk}, v{fk}")
    a(f"v_mul_f32 v{al}, {f32hex(1/64)}, v{fk}")
    a(f"v_mul_f32 v{ph}, v{al}, v{fg}")
    a(f"v_mul_f32 v{ph}, 4.0, v{ph}")
    a(f"v_mul_f32 v{a16}, {f32hex(13.0)}, v{al}")
    C4 = WU; S4 = WU + 4
    for t in range(4):
        for j in range(4):
            a(f"v_cos_f32 v{C4+j}, v{ph}")
            a(f"v_sin_f32 v{S4+j}, v{ph}")
            if t < 2:
                a(f"v_mul_f32 v{p2}, {f32hex(1/32)}, v{ph}")
            if j < 3: a(f"v_add_f32 v{ph}, v{ph}, v{al}")
            elif t < 3: a(f"v_add_f32 v{ph}, v{ph}, v{a16}")
            if t < 2:
                a(f"v_cos_f32 v{TW1C+4*t+j}, v{p2}")
                a(f"v_sin_f32 v{TW1S+4*t+j}, v{p2}")
        for j in range(4):
            a(f"v_cvt_pk_f16_f32 v{CA+8*t+j}, v{C4+j}, v{S4+j}")
            a(f"v_cvt_pk_f16_f32 v{CA+8*t+4+j}, -v{S4+j}, v{C4+j}")
        b = CAI + 6*t
        a(f"v_cvt_pk_bf16_f32 v{b}, v{S4}, v{S4+1}")
        a(f"v_cvt_pk_bf16_f32 v{b+1}, v{S4+2}, v{S4+3}")
        a(f"v_cvt_pk_bf16_f32 v{b+2}, v{C4}, v{C4+1}")
        a(f"v_cvt_pk_bf16_f32 v{b+3}, v{C4+2}, v{C4+3}")
        a(f"v_xor_b32 v{b+4}, s{sSign}, v{b}")
        a(f"v_xor_b32 v{b+5}, s{sSign}, v{b+1}")
        if t in (1, 3): w2_pf_piece(a, 1 + t // 2, sCol, PF)
    a(f"v_mul_f32 v{al}, {f32hex(1/32)}, v{fi}")
    a(f"v_mul_f32 v{ph}, v{al}, v{fg}")
    a(f"v_mul_f32 v{ph}, 4.0, v{ph}")
    for j in range(4):
        a(f"v_cos_f32 v{C4+j}, v{ph}")
        a(f"v_sin_f32 v{S4+j}, v{ph}")
        if j < 3: a(f"v_add_f32 v{ph}, v{ph}, v{al}")
    lm, lm2 = vT+9, vT+10
    a(f"v_and_b32 v{lm}, 1, v{vI}")
    a(f"v_mul_u32_u24 v{lm}, 0x8000, v{lm}")
    a(f"v_lshl_or_b32 v{lm}, v{lm}, 16, v{lm}")
    a(f"s_brev_b32 s46, 1")
    a(f"v_xor_b32 v{lm2}, s46, v{lm}")
    b0 = CB
    a(f"v_cvt_pk_f16_f32 v{b0}, -v{S4}, -v{S4+1}")
    a(f"v_cvt_pk_f16_f32 v{b0+1}, -v{S4+2}, -v{S4+3}")
    a(f"v_cvt_pk_f16_f32 v{b0+2}, v{C4}, v{C4+1}")
    a(f"v_cvt_pk_f16_f32 v{b0+3}, v{C4+2}, v{C4+3}")
    a(f"v_cvt_pk_f16_f32 v{b0+4}, v{S4}, v{S4+1}")
    a(f"v_cvt_pk_f16_f32 v{b0+5}, v{S4+2}, v{S4+3}")
    sc = f32hex(2.0**-19)
    for j in range(8):
        a(f"v_mul_f32 v{C4+j}, {sc}, v{C4+j}")
    b1 = CBI
    a(f"v_cvt_pk_bf16_f32 v{b1}, v{S4}, v{S4+1}")
    a(f"v_cvt_pk_bf16_f32 v{b1+1}, v{S4+2}, v{S4+3}")
    a(f"v_cvt_pk_bf16_f32 v{b1+2}, v{C4}, v{C4+1}")
    a(f"v_cvt_pk_bf16_f32 v{b1+3}, v{C4+2}, v{C4+3}")
    a(f"v_cvt_pk_bf16_f32 v{b1+4}, -v{S4}, -v{S4+1}")
    a(f"v_cvt_pk_bf16_f32 v{b1+5}, -v{S4+2}, -v{S4+3}")
    for base in (CB, CBI):
        for j in range(6):
            a(f"v_xor_b32 v{base+6+j}, v{base+j}, v{lm}")
            a(f"v_xor_b32 v{base+12+j}, s46, v{base+j}")
            a(f"v_xor_b32 v{base+18+j}, v{base+j}, v{lm2}")
    a(f"v_lshlrev_b32 v{p2}, 2, v{vG}")
    a(f"v_add_u32 v{p2}, s45, v{p2}")
    a(f"v_cvt_f32_u32 v{p2}, v{p2}")
    a(f"v_mul_f32 v{al}, {f32hex(1/2048)}, v{fi}")
    for mt in range(2):
        if mt: a(f"v_add_f32 v{al}, {f32hex(16/2048)}, v{al}")
        a(f"v_mul_f32 v{ph}, v{al}, v{p2}")
        for r in range(4):
            a(f"v_cos_f32 v{TW2C+4*mt+r}, v{ph}")
            a(f"v_sin_f32 v{TW2S+4*mt+r}, v{ph}")
            if r < 3: a(f"v_add_f32 v{ph}, v{ph}, v{al}")
    w2_pf_piece(a, 3, sCol, PF)
    vEx = vT+11
    a(f"v_lshlrev_b32 v{vEx}, 4, v{vL}")
    a(f"v_add_u32 v{vT+1}, s44, v{vEx}")
    a.stamp(3)
    a.wait_vm("x3")
    a.stamp(4)
    a(f"s_and_b32 s47, s{sCol}, 255")
    a("s_cmp_lg_u32 s47, 0")
    a("s_cbranch_scc1 FFT_NORM")
    a(f"s_lshr_b32 s47, s{sCol}, 4")
    for j in range(32):
        a(f"v_bfe_u32 v{XF+j}, v{XF+j}, s47, 16")
    a.label("FFT_NORM")
    for t in range(4):
        for mt in range(2):
            for ri in range(2):
                c = "0" if t == 0 else Q(AC+8*ri+4*mt)
                a(f"v_mfma_f32_16x16x32_f16 {Q(AC+8*ri+4*mt)}, {Q(XF+16*mt+4*t)}, {Q(CA+8*t+4*ri)}, {c}")
    a.wait_vm("w")
    for j in range(8):
        a(f"v_lshlrev_b32 v{WU+j}, 16, v{WP+j}")
        a(f"v_and_b32 v{WU+8+j}, s{sMask}, v{WP+j}")
    cmul_pairs(a, AD, AD+8, AC, AC+8, TW1C, TW1S, 8, True)
    for mt in range(2):
        a(f"v_cvt_pk_f16_f32 v{PK+4*mt}, v{AD+4*mt}, v{AD+4*mt+1}")
        a(f"v_cvt_pk_f16_f32 v{PK+4*mt+1}, v{AD+4*mt+2}, v{AD+4*mt+3}")
        a(f"v_cvt_pk_f16_f32 v{PK+4*mt+2}, v{AD+8+4*mt}, v{AD+8+4*mt+1}")
        a(f"v_cvt_pk_f16_f32 v{PK+4*mt+3}, v{AD+8+4*mt+2}, v{AD+8+4*mt+3}")
    for tp in range(2):
        for qt in range(2):
            for ri in range(2):
                blk = CB + 12*qt + 6*tp
                fr = blk + 2 if ri == 0 else blk
                c = "0" if tp == 0 else Q(AC+8*ri+4*qt)
                a(f"v_mfma_f32_16x16x32_f16 {Q(AC+8*ri+4*qt)}, {Q(fr)}, {Q(PK+4*tp)}, {c}")
    w2_pf_piece(a, 4, sCol, PF+1)
    cmul_pairs(a, AD, AD+8, AC, AC+8, WU, WU+8, 8, False)
    for qt in range(2):
        a(f"v_cvt_pk_bf16_f32 v{PK+4*qt}, v{AD+4*qt}, v{AD+4*qt+1}")
        a(f"v_cvt_pk_bf16_f32 v{PK+4*qt+1}, v{AD+4*qt+2}, v{AD+4*qt+3}")
        a(f"v_cvt_pk_bf16_f32 v{PK+4*qt+2}, v{AD+8+4*qt}, v{AD+8+4*qt+1}")
        a(f"v_cvt_pk_bf16_f32 v{PK+4*qt+3}, v{AD+8+4*qt+2}, v{AD+8+4*qt+3}")
    for qt in range(2):
        for mt in range(2):
            for ri in range(2):
                blk = CBI + 12*mt + 6*qt
                fr = blk + 2 if ri == 0 else blk
                c = "0" if qt == 0 else Q(AC+8*ri+4*mt)
                a(f"v_mfma_f32_16x16x32_bf16 {Q(AC+8*ri+4*mt)}, {Q(PK+4*qt)}, {Q(fr)}, {c}")
    cmul_pairs(a, AD, AD+8, AC, AC+8, TW2C, TW2S, 8, False)
    for mt in range(2):
        a(f"v_cvt_pk_bf16_f32 v{PK+4*mt}, v{AD+4*mt}, v{AD+4*mt+1}")
        a(f"v_cvt_pk_bf16_f32 v{PK+4*mt+1}, v{AD+4*mt+2}, v{AD+4*mt+3}")
        a(f"v_cvt_pk_bf16_f32 v{PK+4*mt+2}, v{AD+8+4*mt}, v{AD+8+4*mt+1}")
        a(f"v_cvt_pk_bf16_f32 v{PK+4*mt+3}, v{AD+8+4*mt+2}, v{AD+8+4*mt+3}")
    a(f"ds_write_b128 v{vT+1}, {Q(PK)}", tag="ew")
    a(f"ds_write_b128 v{vT+1}, {Q(PK+4)} offset:1024", tag="ew")
    vO = vT
    a(f"v_and_b32 v{vT+2}, 1, v{vG}")
    a(f"v_lshrrev_b32 v{vT+3}, 1, v{vG}")
    a(f"v_lshl_add_u32 v{vT+2}, v{vT+2}, 1, v{vT+3}")
    a(f"v_lshl_add_u32 v{vT+2}, v{vI}, 2, v{vT+2}")
    a(f"v_lshlrev_b32 v{vO}, 5, v{vT+2}")
    a("s_add_u32 s40, s40, s44")
    a(f"s_add_u32 s40, s40, {YT_OFF}")
    a(f"s_lshr_b32 s47, s{sCol}, 4")
    a("s_and_b32 s47, s47, 16")
    a("s_add_u32 s40, s40, s47")
    w2_pf_piece(a, 5, sCol, PF+1)
    a.wait_lg("ew")
    a.stamp(5)
    a("s_barrier")
    a.stamp(6)
    for u in range(4):
        for mt in range(2):
            a(f"ds_read_b128 {Q(XF+8*u+4*mt)}, v{vEx} offset:{2048*u+1024*mt}", tag=f"e{u}")
    for u in range(4):
        a.wait_lg(f"e{u}")
        for mt in range(2):
            for ri in range(2):
                blk = CAI + 6*u
                fr = blk + 2 if ri == 0 else blk
                c = "0" if u == 0 else Q(AC+8*ri+4*mt)
                a(f"v_mfma_f32_16x16x32_bf16 {Q(AC+8*ri+4*mt)}, {Q(XF+8*u+4*mt)}, {Q(fr)}, {c}")
    for ri in range(2):
        for mt in range(2):
            a(f"v_cvt_pk_bf16_f32 v{PK+4*ri+2*mt}, v{AC+8*ri+4*mt}, v{AC+8*ri+4*mt+1}")
            a(f"v_cvt_pk_bf16_f32 v{PK+4*ri+2*mt+1}, v{AC+8*ri+4*mt+2}, v{AC+8*ri+4*mt+3}")
    for ri in range(2):
        a(f"v_permlane16_swap_b32 v{PK+4*ri}, v{PK+4*ri+2}")
        a(f"v_permlane16_swap_b32 v{PK+4*ri+1}, v{PK+4*ri+3}")
    a(f"buffer_store_dwordx4 {Q(PK)}, v{vO}, s[24:27], s40 offen")
    a(f"s_and_b32 s47, s{sCol}, 255")
    a("s_cmp_eq_u32 s47, 0")
    a("s_cbranch_scc1 K2_END")
    a(f"buffer_store_dwordx4 {Q(PK+4)}, v{vO}, s[24:27], s40 offen offset:16")
    a.stamp(7)
    if Asm.STAMP: a("s_waitcnt vmcnt(0)")
    a.stamp(8); a.stamp(9, True)
    a.stamp_flush(10, 1, 16)
    a("s_endpgm")
    a.vm = []; a.lg = []


def w2_prefetch(a, v1, v2):
    a("s_mul_i32 s48, s33, 44032")
    a(f"v_lshlrev_b32 v{v1}, 7, v0")
    a(f"v_add_u32 v{v2}, 32768, v{v1}")
    a(f"v_min_u32 v{v2}, 43904, v{v2}")
    a(f"buffer_load_dword v{v1}, v{v1}, s[16:19], s48 offen", tag="pf")
    a(f"buffer_load_dword v{v2}, v{v2}, s[16:19], s48 offen", tag="pf")

def w2_pf_piece(a, k, sCol, v1):
    a(f"s_cmp_lg_u32 s3, {k % 4}")
    a(f"s_cbranch_scc1 FFT_PF{k}")
    a(f"v_and_b32 v{v1}, 63, v0")
    a(f"v_lshlrev_b32 v{v1}, 7, v{v1}")
    if k: a(f"v_add_u32 v{v1}, {8192*k}, v{v1}")
    if k == 5: a(f"v_min_u32 v{v1}, 43904, v{v1}")
    a(f"buffer_load_dword v{v1}, v{v1}, s[16:19], s48 offen")
    a.vm = a.vm[:-1]
    a.raw(f"FFT_PF{k}:")

def gen_gemm1_role(a, sMt, sNt):
    NSLOT = 6; STG = 12288
    vI, vG, vL = 1, 2, 3
    vT = 4
    vD = 16
    vRe, vRo, vRe2, vRo2 = 19, 20, 21, 22
    vA = 23
    WF = 24
    ACC = 72
    AX = 120
    a(f"v_and_b32 v{vI}, 15, v0")
    a(f"v_bfe_u32 v{vG}, v0, 4, 2")
    a(f"v_and_b32 v{vL}, 63, v0")
    a("s_mul_i32 s40, s3, 192")
    a(f"s_mul_i32 s41, s{sNt}, 192")
    a("s_mov_b32 s42, 0x15555556")
    for j in range(3):
        idx, row, cp = vT, vT+1, vT+2
        a(f"v_add_u32 v{idx}, s40, v{vL}")
        if j: a(f"v_add_u32 v{idx}, {64*j}, v{idx}")
        a(f"v_mul_hi_u32 v{row}, v{idx}, s42")
        a(f"v_mul_u32_u24 v{cp}, 12, v{row}")
        a(f"v_sub_u32 v{cp}, v{idx}, v{cp}")
        a(f"v_bfe_u32 v{idx}, v{row}, 3, 1")
        a(f"v_lshlrev_b32 v{idx}, 1, v{idx}")
        a(f"v_xor_b32 v{cp}, v{cp}, v{idx}")
        a(f"v_mul_u32_u24 v{row}, 2752, v{row}")
        a(f"v_lshl_add_u32 v{row}, v{cp}, 4, v{row}")
        a(f"v_add_u32 v{vD+j}, s41, v{row}")
        if j: a(f"v_subrev_u32 v{vD+j}, {1024*j}, v{vD+j}")
    a(f"s_lshl_b32 s43, s{sMt}, 17")
    a("s_lshl_b32 s44, s3, 15")
    a("s_add_u32 s43, s43, s44")
    if XN_OFF: a(f"s_add_u32 s43, s43, {XN_OFF}")
    a("s_add_u32 s44, s43, 16384")
    a(f"v_lshlrev_b32 v{vA}, 4, v{vL}")
    a("s_mul_i32 s45, s3, 3072")
    def dma(t):
        slot = t % NSLOT
        a(f"s_add_u32 m0, s45, {slot*STG}")
        a(f"s_mov_b32 s46, {t*64*2752}")
        for j in range(3):
            a(f"buffer_load_dwordx4 v{vD+j}, s[20:23], s46 offen offset:{1024*j} lds", tag=f"b{t}")
    def aload(s):
        if s and s % 4 == 0:
            a("s_add_u32 s43, s43, 4096"); a("s_add_u32 s44, s44, 4096")
        for rt in range(2):
            a(f"buffer_load_dwordx4 {Q(AX+8*s+4*rt)}, v{vA}, s[24:27], s{43+rt} offen offset:{1024*(s%4)}", tag=f"a{s}")
    a.dropping = True
    LA = G1_LA
    for t in range(LA):
        dma(t); aload(2*t); aload(2*t+1)
    a(f"v_lshrrev_b32 v{vT}, 2, v{vI}")
    a(f"v_lshl_add_u32 v{vT}, v{vG}, 3, v{vT}")
    a(f"v_mul_u32_u24 v{vT}, 192, v{vT}")
    a(f"v_and_b32 v{vT+1}, 3, v{vI}")
    a(f"v_lshl_add_u32 v{vT}, v{vT+1}, 3, v{vT}")
    a(f"v_and_b32 v{vT+1}, 1, v{vG}")
    a(f"v_lshlrev_b32 v{vT+1}, 5, v{vT+1}")
    a(f"v_add_u32 v{vRe}, v{vT}, v{vT+1}")
    a(f"v_sub_u32 v{vRo}, v{vT}, v{vT+1}")
    a(f"v_add_u32 v{vRe2}, {3*STG}, v{vRe}")
    a(f"v_add_u32 v{vRo2}, {3*STG}, v{vRo}")
    def read1(s, j, h):
        t = s // 2; ks = s % 2; slot = t % NSLOT
        st = WF + 24*(s % 2)
        base = (vRe if j % 2 == 0 else vRo) if slot < 3 else (vRe2 if j % 2 == 0 else vRo2)
        off = (slot % 3)*STG + ks*6144 + j*32 + 768*h
        a(f"ds_read_b64_tr_b16 {P(st+4*j+2*h)}, v{base} offset:{off}", tag=f"r{s}")
    a.stamp(3)
    a.wait_vm("b0")
    a.stamp(4)
    a("s_barrier")
    for j in range(6):
        for h in range(2): read1(0, j, h)
    for s in range(16):
        if s == 8: a.stamp(5)
        a.wait_lg(f"r{s}")
        a.wait_vm(f"a{s}")
        st = WF + 24*(s % 2)
        m = 0
        for j in range(6):
            for rt in range(2):
                d = ACC + 24*rt + 4*j
                c = "0" if s == 0 else Q(d)
                a(f"v_mfma_f32_16x16x32_bf16 {Q(d)}, {Q(st+4*j)}, {Q(AX+8*s+4*rt)}, {c}")
                if s + 1 < 16:
                    if m == 0 and (s + 1) % 2 == 0:
                        tn = (s + 1) // 2
                        a.wait_vm(f"b{tn}")
                        a("s_barrier")
                    if m == 2 and s % 2 == 0 and s // 2 + LA < 8: dma(s // 2 + LA)
                    if m == 6 and s + 2*LA < 16: aload(s + 2*LA)
                    read1(s + 1, m // 2, m % 2)
                m += 1
    a.stamp(6)
    a.dropping = False
    a(f"v_and_b32 v{vT}, 1, v{vG}")
    a(f"v_lshlrev_b32 v{vT}, 9, v{vT}")
    a(f"v_lshrrev_b32 v{vT+1}, 1, v{vG}")
    a(f"v_lshl_add_u32 v{vT}, v{vT+1}, 8, v{vT}")
    a(f"v_lshl_add_u32 v{vA}, v{vI}, 4, v{vT}")
    a(f"s_lshl_b32 s43, s{sMt}, 3")
    a("s_lshl_b32 s44, s3, 1")
    a("s_add_u32 s43, s43, s44")
    a(f"s_mul_i32 s43, s43, {HT_STRIDE}")
    a(f"s_mul_i32 s44, s{sNt}, 3072")
    a("s_add_u32 s43, s43, s44")
    a(f"s_add_u32 s43, s43, {H_OFF}")
    a(f"s_add_u32 s44, s43, {HT_STRIDE}")
    a("s_mov_b32 s28, 0xffff0000")
    a(f"s_mov_b32 s46, {f32hex(-1.4426950408889634)}")
    E = AX
    for p in range(3):
        if p == 1:
            a(f"s_cmp_eq_u32 s{sNt}, 14")
            a("s_cbranch_scc1 K2_END")
        for rt in range(2):
            src = ACC + 24*rt + 8*p
            hb = E + 32*rt; e = hb + 8; pk = hb + 16
            for j in range(4):
                a(f"v_cvt_pk_bf16_f32 v{pk+j}, v{src+2*j}, v{src+2*j+1}")
            for j in range(4):
                a(f"v_lshlrev_b32 v{hb+2*j}, 16, v{pk+j}")
                a(f"v_and_b32 v{hb+2*j+1}, s28, v{pk+j}")
            for j in range(4):
                a(f"v_pk_mul_f32 {P(e+2*j)}, {P(hb+2*j)}, s[46:47] op_sel_hi:[1,0]")
            for j in range(8):
                a(f"v_exp_f32 v{e+j}, v{e+j}")
            for j in range(4):
                a(f"v_pk_add_f32 {P(e+2*j)}, {P(e+2*j)}, 1.0 op_sel_hi:[1,0]")
            for j in range(8):
                a(f"v_rcp_f32 v{e+j}, v{e+j}")
            for j in range(4):
                a(f"v_pk_mul_f32 {P(e+2*j)}, {P(e+2*j)}, {P(hb+2*j)}")
            for j in range(4):
                a(f"v_cvt_pk_bf16_f32 v{pk+4+j}, v{e+2*j}, v{e+2*j+1}")
            a(f"v_permlane16_swap_b32 v{pk+4}, v{pk+6}")
            a(f"v_permlane16_swap_b32 v{pk+5}, v{pk+7}")
            a(f"buffer_store_dwordx4 {Q(pk+4)}, v{vA}, s[24:27], s{43+rt} offen offset:{1024*p}")
        E = AX + 64 if p % 2 == 0 else AX
    a.stamp(7)
    if Asm.STAMP: a("s_waitcnt vmcnt(0)")
    a.stamp(8); a.stamp(9, True)
    a.stamp_flush(10, 1, 16)
    a("s_endpgm")
    a.vm = []; a.lg = []


def gen_k2(a, name):
    a.raw(f".globl {name}\n.p2align 8\n.type {name},@function\n{name}:")
    a.stamp(0, True); a.stamp(1)
    a("s_cmp_gt_u32 s2, 512")
    a("s_cbranch_scc1 K2_END")
    a("s_load_dwordx4 s[8:11], s[0:1], 32")
    a("s_load_dwordx2 s[12:13], s[0:1], 64")
    a("v_lshrrev_b32 v4, 6, v0")
    a("v_readfirstlane_b32 s3, v4")
    a("s_lshr_b32 s30, s2, 3")
    a("s_lshr_b32 s31, s2, 8")
    a("s_add_u32 s30, s30, s31")
    a("s_lshr_b32 s31, s2, 4")
    a("s_lshl_b32 s31, s31, 3")
    a("s_and_b32 s32, s2, 7")
    a("s_or_b32 s31, s31, s32")
    a("s_waitcnt lgkmcnt(0)")
    a.stamp(2)
    srd(a, 24, 12, 13, WS_SIZE)
    srd(a, 20, 8, 9, 512*2752)
    srd(a, 16, 10, 11, 1376*1024)
    a("s_cmp_eq_u32 s2, 512")
    a("s_cbranch_scc1 K2_FFT")
    a("s_bitcmp1_b32 s30, 0")
    a("s_cbranch_scc1 K2_FFT")
    a("s_lshr_b32 s33, s31, 3")
    a("s_lshl_b32 s34, s32, 1")
    a("s_and_b32 s35, s33, 1")
    a("s_add_u32 s34, s34, s35")
    a("s_lshr_b32 s35, s33, 1")
    a("s_cmp_gt_u32 s35, 14")
    a("s_cbranch_scc1 K2_END")
    gen_gemm1_role(a, 34, 35)
    a.label("K2_FFT")
    import os
    if os.environ.get("NOFFT"): a("s_endpgm")
    gen_fft_role(a, 31)
    a.label("K2_END")
    a("s_endpgm")
```

```python
from asmlib import *
from layout import *
from k1 import f32hex, srd, P, Q
from k2 import cmul_pairs

def gen_rowifft(a, sSb, sHalf, ldsbase, nthreads, R0=1, endlabel=None, store_mods=""):
    vI, vG, vL = R0, R0+1, R0+2
    vT = R0+3
    base = (R0 + 15 + 3) // 4 * 4
    LD = base
    RE2 = base+16; IM2 = base+20; SP0 = base+24; SP1 = base+28
    TWC = base+32; TWS = base+36
    B1 = base+40
    TR = base+48; TI = base+64
    C8 = base+80; S8 = base+88
    XV = base+96
    OUT = base+112
    M0F = base+120
    AD = base+128
    last = base+132
    sSign = 29; sMask = 28
    nld = 512 // nthreads
    a(f"v_and_b32 v{vI}, 15, v0")
    a(f"v_bfe_u32 v{vG}, v0, 4, 2")
    a(f"v_and_b32 v{vL}, 63, v0")
    a(f"v_lshrrev_b32 v{vT}, 1, v0")
    a(f"v_and_b32 v{vT+1}, 1, v0")
    a(f"v_lshlrev_b32 v{vT+1}, 4, v{vT+1}")
    a(f"v_lshl_add_u32 v{vT}, v{vT}, 13, v{vT+1}")
    a(f"s_lshl_b32 s40, s{sSb}, 5")
    a(f"s_add_u32 s40, s40, {YT_OFF}")
    for j in range(nld):
        if j: a(f"s_add_u32 s40, s40, {(nthreads//2)*8192}")
        a(f"buffer_load_dwordx4 {Q(LD+4*j)}, v{vT}, s[24:27], s40 offen", tag="y")
    a(f"s_lshl_b32 s41, s{sSb}, 13")
    a(f"s_lshl_b32 s42, s{sHalf}, 12")
    a("s_add_u32 s41, s41, s42")
    vX = vT+2
    a(f"v_lshlrev_b32 v{vX}, 5, v{vI}")
    a(f"v_lshl_add_u32 v{vX}, v{vG}, 3, v{vX}")
    for i in range(4):
        for at in range(2):
            a(f"buffer_load_dwordx2 {P(XV+4*i+2*at)}, v{vX}, s[12:15], s41 offen offset:{1024*i+512*at}", tag="xv")
    a(f"s_mov_b32 s{sMask}, 0xffff0000")
    a(f"s_mov_b32 s{sSign}, 0x80008000")
    fi, fg, al, ph, p2 = vT+3, vT+4, vT+5, vT+6, vT+7
    a(f"v_cvt_f32_u32 v{fi}, v{vI}")
    a(f"v_cvt_f32_u32 v{fg}, v{vG}")
    a(f"v_mul_f32 v{al}, {f32hex(1/16)}, v{fi}")
    a(f"v_mul_f32 v{ph}, v{al}, v{fg}")
    a(f"v_mul_f32 v{ph}, 4.0, v{ph}")
    a(f"v_mul_f32 v{p2}, {f32hex(-15/32)}, v{fi}")
    a(f"v_cmp_gt_u32 vcc, 2, v{vG}")
    a(f"v_cndmask_b32 v{p2}, v{p2}, 0, vcc")
    for e in range(4):
        a(f"v_cos_f32 v{C8+e}, v{ph}")
        a(f"v_sin_f32 v{S8+e}, v{ph}")
        a(f"v_add_f32 v{vT+8}, v{ph}, v{p2}")
        if e < 3: a(f"v_add_f32 v{ph}, v{ph}, v{al}")
        a(f"v_cos_f32 v{C8+4+e}, v{vT+8}")
        a(f"v_sin_f32 v{S8+4+e}, v{vT+8}")
    lo, hi, sg = vT+8, vT+9, vT+10
    a(f"v_cndmask_b32 v{lo}, 0, -1, vcc")
    a(f"v_cndmask_b32 v{hi}, -1, 0, vcc")
    a(f"v_and_b32 v{sg}, s{sSign}, v{hi}")
    a(f"v_cvt_pk_bf16_f32 v{RE2}, v{C8}, v{C8+1}")
    a(f"v_cvt_pk_bf16_f32 v{RE2+1}, v{C8+2}, v{C8+3}")
    a(f"v_cvt_pk_bf16_f32 v{RE2+2}, -v{S8}, -v{S8+1}")
    a(f"v_cvt_pk_bf16_f32 v{RE2+3}, -v{S8+2}, -v{S8+3}")
    a(f"v_cvt_pk_bf16_f32 v{IM2}, v{S8}, v{S8+1}")
    a(f"v_cvt_pk_bf16_f32 v{IM2+1}, v{S8+2}, v{S8+3}")
    a(f"v_xor_b32 v{IM2+2}, v{RE2}, v{sg}")
    a(f"v_xor_b32 v{IM2+3}, v{RE2+1}, v{sg}")
    a(f"v_xor_b32 v{RE2+2}, v{RE2+2}, v{sg}")
    a(f"v_xor_b32 v{RE2+3}, v{RE2+3}, v{sg}")
    a(f"v_and_b32 v{vT+11}, 1, v{vI}")
    a(f"v_lshlrev_b32 v{vT+11}, 31, v{vT+11}")
    a(f"v_xor_b32 v{vT+11}, {f32hex(-0.5)}, v{vT+11}")
    a(f"v_cmp_eq_u32 vcc, 0, v{vG}")
    a(f"v_cndmask_b32 v{C8+4}, v{C8+4}, 0.5, vcc")
    a(f"v_cndmask_b32 v{S8+4}, v{S8+4}, v{vT+11}, vcc")
    x0 = TR
    a(f"v_cvt_pk_bf16_f32 v{x0}, v{C8+4}, v{C8+5}")
    a(f"v_cvt_pk_bf16_f32 v{x0+1}, v{C8+6}, v{C8+7}")
    a(f"v_cvt_pk_bf16_f32 v{x0+2}, -v{S8+4}, -v{S8+5}")
    a(f"v_cvt_pk_bf16_f32 v{x0+3}, -v{S8+6}, -v{S8+7}")
    for j in range(4):
        a(f"v_and_b32 v{SP0+j}, v{x0+j}, v{lo}")
        a(f"v_and_b32 v{SP1+j}, v{x0+j}, v{hi}")
    a(f"v_mul_f32 v{al}, {f32hex(1/512)}, v{fi}")
    a(f"v_mul_f32 v{ph}, v{al}, v{fg}")
    a(f"v_mul_f32 v{al}, 4.0, v{al}")
    for tj in range(4):
        a(f"v_cos_f32 v{TWC+tj}, v{ph}")
        a(f"v_sin_f32 v{TWS+tj}, v{ph}")
        if tj < 3: a(f"v_add_f32 v{ph}, v{ph}, v{al}")
    a(f"v_and_b32 v{vT+11}, 1, v{vI}")
    a(f"v_lshlrev_b32 v{vT+11}, 31, v{vT+11}")
    a(f"v_xor_b32 v{vT+11}, {f32hex(-1.0)}, v{vT+11}")
    for at in range(2):
        a(f"v_mul_f32 v{al}, {f32hex(1/32)}, v{fi}")
        if at: a(f"v_add_f32 v{al}, 0.5, v{al}")
        a(f"v_mul_f32 v{ph}, v{al}, v{fg}")
        a(f"v_mul_f32 v{al}, 4.0, v{al}")
        for e in range(4):
            a(f"v_cos_f32 v{C8+e}, v{ph}")
            a(f"v_sin_f32 v{S8+e}, v{ph}")
            if e < 3: a(f"v_add_f32 v{ph}, v{ph}, v{al}")
        a(f"v_cndmask_b32 v{S8}, v{S8}, v{vT+11}, vcc")
        a(f"v_cvt_pk_bf16_f32 v{B1+4*at}, v{C8}, v{C8+1}")
        a(f"v_cvt_pk_bf16_f32 v{B1+4*at+1}, v{C8+2}, v{C8+3}")
        a(f"v_cvt_pk_bf16_f32 v{B1+4*at+2}, -v{S8}, -v{S8+1}")
        a(f"v_cvt_pk_bf16_f32 v{B1+4*at+3}, -v{S8+2}, -v{S8+3}")
    r_, cc_, cA, cB = vT+3, vT+4, vT+5, vT+6
    a(f"v_lshrrev_b32 v{r_}, 2, v{vI}")
    a(f"v_and_b32 v{cc_}, 3, v{vI}")
    a(f"v_lshl_add_u32 v{r_}, v{vG}, 2, v{r_}")
    a(f"v_lshl_add_u32 v{cA}, v{r_}, 5, v{cc_}")
    a(f"v_sub_u32 v{cB}, 512, v{cA}")
    a(f"v_cmp_gt_u32 vcc, 2, v{vG}")
    a(f"v_cndmask_b32 v{cB}, v{cB}, v{cA}, vcc")
    a(f"v_mov_b32 v{vT+7}, 128")
    a(f"v_sub_u32 v{vT+8}, 0, v{vT+7}")
    a(f"v_cndmask_b32 v{vT+7}, v{vT+8}, v{vT+7}, vcc")
    a(f"s_lshl_b32 s43, s{sHalf}, 3")
    a(f"s_add_u32 s43, s43, {ldsbase}")
    a(f"v_lshl_add_u32 v{AD}, v{cB}, 5, s43")
    a(f"v_add_u32 v{AD+1}, v{AD}, v{vT+7}")
    a(f"v_add_u32 v{AD+2}, v{AD+1}, v{vT+7}")
    a(f"v_add_u32 v{AD+3}, v{AD+2}, v{vT+7}")
    a(f"v_subrev_u32 v{cA}, 240, v{cA}")
    a(f"v_lshl_add_u32 v{cA}, v{cA}, 5, s43")
    a(f"v_cmp_eq_u32 vcc, 512, v{cB}") if False else None
    a(f"v_lshrrev_b32 v{vT+8}, 1, v{vG}")
    a(f"v_sub_u32 v{vT+8}, v{cc_}, v{vT+8}")
    a(f"v_cmp_eq_u32 vcc, -1, v{vT+8}")
    a(f"v_cndmask_b32 v{AD}, v{AD}, v{cA}, vcc")
    mk0, mk1 = vT+3, vT+4
    a(f"v_cmp_gt_u32 vcc, 4, v{vI}")
    a(f"v_cndmask_b32 v{mk0}, 0, -1, vcc")
    a(f"v_cndmask_b32 v{mk1}, -1, 0, vcc")
    a(f"v_lshlrev_b32 v{vT}, 4, v0")
    a.wait_vm("y")
    for j in range(nld):
        a(f"ds_write_b128 v{vT}, {Q(LD+4*j)} offset:{ldsbase + nthreads*16*j}", tag="yw")
    a.wait_lg("yw")
    a("s_barrier")
    if endlabel is not None:
        a("s_cmp_gt_u32 s3, 1")
        a(f"s_cbranch_scc1 {endlabel}")
    for tj in range(4):
        a(f"ds_read_b64_tr_b16 {P(LD+4*tj)}, v{AD+tj}", tag=f"t{tj}")
        a(f"ds_read_b64_tr_b16 {P(LD+4*tj+2)}, v{AD+tj} offset:16", tag=f"t{tj}")
    a.wait_lg("t0")
    for j in range(4):
        a(f"v_and_b32 v{M0F+j}, v{LD+j}, v{mk1}")
        a(f"v_and_b32 v{M0F+4+j}, v{LD+j}, v{mk0}")
    for tj in (1, 2, 3):
        a.wait_lg(f"t{tj}")
        a(f"v_mfma_f32_16x16x32_bf16 {Q(TR+4*tj)}, {Q(LD+4*tj)}, {Q(RE2)}, 0")
        a(f"v_mfma_f32_16x16x32_bf16 {Q(TI+4*tj)}, {Q(LD+4*tj)}, {Q(IM2)}, 0")
    a(f"v_mfma_f32_16x16x32_bf16 {Q(TR)}, {Q(M0F)}, {Q(RE2)}, 0")
    a(f"v_mfma_f32_16x16x32_bf16 {Q(TI)}, {Q(M0F)}, {Q(IM2)}, 0")
    a(f"v_mfma_f32_16x16x32_bf16 {Q(TR)}, {Q(M0F+4)}, {Q(SP0)}, {Q(TR)}")
    a(f"v_mfma_f32_16x16x32_bf16 {Q(TI)}, {Q(M0F+4)}, {Q(SP1)}, {Q(TI)}")
    UR = LD; UI = C8
    for tj in (1, 2, 3, 0):
        cs = TWC + tj; ss = TWS + tj
        cp = f"v[{cs & ~1}:{(cs & ~1)+1}]"; sp = f"v[{ss & ~1}:{(ss & ~1)+1}]"
        o = cs & 1
        sel2 = f"op_sel:[0,{o}] op_sel_hi:[1,{o}]"
        sel3 = f"op_sel:[0,{o},0] op_sel_hi:[1,{o},1]"
        for h in range(2):
            a(f"v_pk_mul_f32 {P(UR+4*tj+2*h)}, {P(TR+4*tj+2*h)}, {cp} {sel2}")
            a(f"v_pk_mul_f32 {P(UI+4*tj+2*h)}, {P(TI+4*tj+2*h)}, {cp} {sel2}")
        for h in range(2):
            a(f"v_pk_fma_f32 {P(UR+4*tj+2*h)}, {P(TI+4*tj+2*h)}, {sp}, {P(UR+4*tj+2*h)} {sel3} neg_lo:[1,0,0] neg_hi:[1,0,0]")
            a(f"v_pk_fma_f32 {P(UI+4*tj+2*h)}, {P(TR+4*tj+2*h)}, {sp}, {P(UI+4*tj+2*h)} {sel3}")
    FR = TR
    for i in range(4):
        a(f"v_cvt_pk_bf16_f32 v{FR+4*i}, v{UR+i}, v{UR+4+i}")
        a(f"v_cvt_pk_bf16_f32 v{FR+4*i+1}, v{UR+8+i}, v{UR+12+i}")
        a(f"v_cvt_pk_bf16_f32 v{FR+4*i+2}, v{UI+i}, v{UI+4+i}")
        a(f"v_cvt_pk_bf16_f32 v{FR+4*i+3}, v{UI+8+i}, v{UI+12+i}")
    O = TI
    def oreg(i, at):
        k = 2*i + at
        return (TI + 4*k) if k < 4 else (LD + 4*(k-4))
    for i in range(4):
        for at in range(2):
            a(f"v_mfma_f32_16x16x32_bf16 {Q(oreg(i, at))}, {Q(FR+4*i)}, {Q(B1+4*at)}, 0")
    a(f"s_add_u32 s41, s41, {XA_OFF}")
    a.wait_vm("xv")
    for i in range(4):
        for at in range(2):
            o = oreg(i, at); xv = XV + 4*i + 2*at; t = C8 + 8*(at)
            a(f"v_cvt_pk_bf16_f32 v{o}, v{o}, v{o+1}")
            a(f"v_cvt_pk_bf16_f32 v{o+1}, v{o+2}, v{o+3}")
            a(f"v_lshlrev_b32 v{t}, 16, v{o}")
            a(f"v_and_b32 v{t+1}, s{sMask}, v{o}")
            a(f"v_lshlrev_b32 v{t+2}, 16, v{o+1}")
            a(f"v_and_b32 v{t+3}, s{sMask}, v{o+1}")
            a(f"v_lshlrev_b32 v{t+4}, 16, v{xv}")
            a(f"v_and_b32 v{t+5}, s{sMask}, v{xv}")
            a(f"v_lshlrev_b32 v{t+6}, 16, v{xv+1}")
            a(f"v_and_b32 v{t+7}, s{sMask}, v{xv+1}")
            a(f"v_pk_add_f32 {P(t)}, {P(t)}, {P(t+4)}")
            a(f"v_pk_add_f32 {P(t+2)}, {P(t+2)}, {P(t+6)}")
            a(f"v_cvt_pk_bf16_f32 v{o+2}, v{t}, v{t+1}")
            a(f"v_cvt_pk_bf16_f32 v{o+3}, v{t+2}, v{t+3}")
            a(f"buffer_store_dwordx2 {P(o+2)}, v{vX}, s[24:27], s41 offen offset:{1024*i+512*at}{store_mods}", tag="xast")
    return last


def gen_k3a(a, name):
    a.raw(f".globl {name}\n.p2align 8\n.type {name},@function\n{name}:")
    a("s_cmp_gt_u32 s2, 255")
    a("s_cbranch_scc1 K3A_END")
    a("s_load_dwordx2 s[8:9], s[0:1], 0")
    a("s_load_dwordx2 s[10:11], s[0:1], 64")
    a("v_lshrrev_b32 v4, 6, v0")
    a("v_readfirstlane_b32 s3, v4")
    a("s_waitcnt lgkmcnt(0)")
    srd(a, 24, 10, 11, WS_SIZE)
    srd(a, 12, 8, 9, 2097152)
    a("s_lshr_b32 s30, s2, 3")
    a("s_and_b32 s31, s2, 7")
    a("s_lshl_b32 s31, s31, 5")
    a("s_add_u32 s30, s30, s31")
    gen_rowifft(a, 30, 3, 0, 128)
    a.label("K3A_END")
    a("s_endpgm")
    a.vm = []; a.lg = []


def gen_k3b(a, name, NSLOT=8):
    a.raw(f".globl {name}\n.p2align 8\n.type {name},@function\n{name}:")
    STG = 8192; NST = 22; NSTEP = 43
    vI, vG, vL = 1, 2, 3
    vT = 4
    vD = 12
    vR = 14
    vA = 18; vO = 19
    XA = 20
    ACC = 28
    WF = 44
    a.stamp(0, True); a.stamp(1)
    a("s_cmp_gt_u32 s2, 255")
    a("s_cbranch_scc1 K3B_END")
    a("s_load_dwordx4 s[8:11], s[0:1], 40")
    a("s_load_dwordx2 s[12:13], s[0:1], 64")
    a(f"v_lshrrev_b32 v{vT}, 6, v0")
    a(f"v_and_b32 v{vI}, 15, v0")
    a(f"v_readfirstlane_b32 s3, v{vT}")
    a(f"v_bfe_u32 v{vG}, v0, 4, 2")
    a(f"v_and_b32 v{vL}, 63, v0")
    a("s_and_b32 s30, s2, 7")
    a("s_lshr_b32 s31, s2, 3")
    a("s_lshl_b32 s30, s30, 2")
    a("s_and_b32 s32, s31, 3")
    a("s_add_u32 s30, s30, s32")
    a("s_lshr_b32 s31, s31, 2")
    a(f"v_lshrrev_b32 v{vT}, 3, v{vL}")
    a(f"v_bfe_u32 v{vT+1}, v{vL}, 4, 1")
    a(f"v_and_b32 v{vT+2}, 7, v{vL}")
    a(f"v_lshlrev_b32 v{vT+1}, 1, v{vT+1}")
    a(f"v_xor_b32 v{vT+2}, v{vT+2}, v{vT+1}")
    a(f"v_lshlrev_b32 v{vT}, 10, v{vT}")
    a("s_lshl_b32 s33, s3, 14")
    a("s_lshl_b32 s34, s31, 7")
    a("s_add_u32 s33, s33, s34")
    a(f"v_lshl_add_u32 v{vD}, v{vT+2}, 4, v{vT}")
    a(f"v_xor_b32 v{vT+2}, 4, v{vT+2}")
    a(f"v_lshl_add_u32 v{vD+1}, v{vT+2}, 4, v{vT}")
    a(f"v_add_u32 v{vD}, s33, v{vD}")
    a(f"v_add_u32 v{vD+1}, s33, v{vD+1}")
    a(f"v_add_u32 v{vD+1}, {8192-1024}, v{vD+1}")
    a("s_lshl_b32 s35, s30, 2")
    a("s_add_u32 s35, s35, s3")
    a(f"s_mul_i32 s36, s35, {HT_STRIDE}")
    a(f"s_add_u32 s36, s36, {H_OFF}")
    a(f"v_lshlrev_b32 v{vA}, 4, v{vL}")
    a("s_lshl_b32 s37, s3, 11")
    a("s_waitcnt lgkmcnt(0)")
    a.stamp(2)
    srd(a, 20, 8, 9, 1376*1024)
    srd(a, 24, 12, 13, WS_SIZE)
    srd(a, 16, 10, 11, 2097152)
    def dma(t):
        a(f"s_add_u32 m0, s37, {(t % NSLOT)*STG}")
        a(f"s_mov_b32 s38, {t*65536}")
        for j in range(2):
            if 64*t + 32 + 0 > 1376 - 1 and False: pass
            a(f"buffer_load_dwordx4 v{vD+j}, s[20:23], s38 offen offset:{1024*j} lds", tag=f"b{t}")
    def aload(s):
        if s and s % 4 == 0: a("s_add_u32 s36, s36, 4096")
        a(f"buffer_load_dwordx4 a[{4*s}:{4*s+3}], v{vA}, s[24:27], s36 offen offset:{1024*(s%4)}", tag=f"a{s}")
    issuedA = 0
    a.dropping = True
    LA = G2_LA
    for t in range(LA):
        dma(t)
        for s in (2*t, 2*t+1): aload(s); issuedA += 1
    a(f"v_and_b32 v{vT}, 1, v{vG}")
    a(f"v_lshlrev_b32 v{vT}, 5, v{vT}")
    a(f"v_lshrrev_b32 v{vT+1}, 1, v{vG}")
    a(f"v_lshl_add_u32 v{vT}, v{vT+1}, 4, v{vT}")
    a(f"v_and_b32 v{vT+1}, 3, v{vI}")
    a(f"v_lshl_add_u32 v{vT}, v{vT+1}, 15, v{vT}")
    a(f"v_bfe_u32 v{vT+1}, v{vI}, 2, 1")
    a(f"v_lshl_add_u32 v{vT}, v{vT+1}, 10, v{vT}")
    a(f"v_lshrrev_b32 v{vT+1}, 3, v{vI}")
    a(f"v_lshl_add_u32 v{vO}, v{vT+1}, 11, v{vT}")
    a("s_lshr_b32 s39, s35, 3")
    a("s_lshl_b32 s39, s39, 17")
    a("s_and_b32 s41, s35, 7")
    a("s_lshl_b32 s41, s41, 12")
    a("s_add_u32 s39, s39, s41")
    a("s_add_u32 s39, s39, s34")
    a(f"s_add_u32 s40, s39, {XA_OFF}")
    a(f"v_lshrrev_b32 v{vT}, 2, v{vI}")
    a(f"v_lshl_add_u32 v{vT+1}, v{vG}, 3, v{vT}")
    a(f"v_lshlrev_b32 v{vT+1}, 7, v{vT+1}")
    a(f"v_and_b32 v{vT+2}, 3, v{vI}")
    a(f"v_lshl_add_u32 v{vT+1}, v{vT+2}, 3, v{vT+1}")
    a(f"v_lshrrev_b32 v{vT}, 1, v{vT}")
    a(f"v_and_b32 v{vT+2}, 1, v{vG}")
    a(f"v_lshl_add_u32 v{vT}, v{vT+2}, 1, v{vT}")
    for j in range(4):
        a(f"v_xor_b32 v{vT+2}, {j}, v{vT}")
        a(f"v_lshl_add_u32 v{vR+j}, v{vT+2}, 5, v{vT+1}")
    def read1(t, n):
        ks, j, h = n // 8, (n // 2) % 4, n % 2
        if 2*t + ks >= NSTEP: return
        st = WF + 32*(t % 2)
        off = (t % NSLOT)*STG + ks*4096 + 512*h
        a(f"ds_read_b64_tr_b16 {P(st+16*ks+4*j+2*h)}, v{vR+j} offset:{off}", tag=f"r{t}_{ks}")
    a.stamp(3)
    a.wait_vm("b0")
    a.stamp(4)
    a("s_barrier")
    for n in range(16): read1(0, n)
    for t in range(NST):
        if t == 11: a.stamp(5)
        st = WF + 32*(t % 2)
        m = 0
        for ks in range(2):
            s = 2*t + ks
            if s >= NSTEP: continue
            a.wait_lg(f"r{t}_{ks}")
            a.wait_vm(f"a{s}")
            for j in range(4):
                c = "0" if s == 0 else Q(ACC+4*j)
                a(f"v_mfma_f32_16x16x32_bf16 {Q(ACC+4*j)}, {Q(st+16*ks+4*j)}, a[{4*s}:{4*s+3}], {c}")
                if t + 1 < NST:
                    if m == 0:
                        a.wait_vm(f"b{t+1}")
                        a("s_barrier")
                        if t == NST - 4:
                            a(f"buffer_load_dwordx4 {Q(XA)}, v{vO}, s[24:27], s40 offen", tag="xa")
                            a(f"buffer_load_dwordx4 {Q(XA+4)}, v{vO}, s[24:27], s40 offen offset:64", tag="xa")
                    if m == 1 and t + LA < NST: dma(t + LA)
                    if m in (4, 6) and issuedA < NSTEP: aload(issuedA); issuedA += 1
                    if m == 3: a.wait_lg(f"r{t}_1")
                    read1(t + 1, 2*m); read1(t + 1, 2*m + 1)
                m += 1
    a.stamp(6)
    a.dropping = False
    a("s_mov_b32 s28, 0xffff0000")
    PKB = WF; U = WF + 8; V = WF + 24
    for j in range(8):
        a(f"v_cvt_pk_bf16_f32 v{PKB+j}, v{ACC+2*j}, v{ACC+2*j+1}")
    for p in range(2):
        a(f"v_permlane16_swap_b32 v{PKB+4*p}, v{PKB+4*p+2}")
        a(f"v_permlane16_swap_b32 v{PKB+4*p+1}, v{PKB+4*p+3}")
    a.wait_vm("xa")
    for j in range(8):
        a(f"v_lshlrev_b32 v{U+2*j}, 16, v{PKB+j}")
        a(f"v_and_b32 v{U+2*j+1}, s28, v{PKB+j}")
        a(f"v_lshlrev_b32 v{V+2*j}, 16, v{XA+j}")
        a(f"v_and_b32 v{V+2*j+1}, s28, v{XA+j}")
    for j in range(8):
        a(f"v_pk_add_f32 {P(U+2*j)}, {P(U+2*j)}, {P(V+2*j)}")
    for j in range(8):
        a(f"v_cvt_pk_bf16_f32 v{PKB+j}, v{U+2*j}, v{U+2*j+1}")
    a(f"buffer_store_dwordx4 {Q(PKB)}, v{vO}, s[16:19], s39 offen")
    a(f"buffer_store_dwordx4 {Q(PKB+4)}, v{vO}, s[16:19], s39 offen offset:64")
    a.stamp(7)
    if Asm.STAMP: a("s_waitcnt vmcnt(0)")
    a.stamp(8); a.stamp(9, True)
    a.stamp_flush(10, 3, 4)
    a.label("K3B_END")
    a("s_endpgm")
    a.vm = []; a.lg = []
```

```python
MB = 1 << 20
WS_SIZE = 256 * MB
XN_OFF = 0
XT_OFF = 2 * MB
WT_OFF = 4 * MB
H_OFF = 8 * MB
YT_OFF = 16 * MB
XA_OFF = 18 * MB
K1_OUT = 8192
K1_LDS = 8192 + 9216
HT_STRIDE = 43 * 1024
import os
G1_LA = int(os.environ.get('G1_LA', 2))
G2_LA = int(os.environ.get('G2_LA', 4))
```

```python
import sys
from asmlib import *
from layout import *
import k1, k2, k3

HEADER = open("parallel_sum__spectral_gfnet__dense_activation_silu__prompt.s.ref").read().split("; Override launch")[0]

def build(path):
    parts = []; kds = []
    def one(gen, name, **kw):
        a = Asm(); gen(a, name, **kw)
        parts.append(a.text())
        acc = (a.maxv + 1 + 3) // 4 * 4
        nv = acc + a.maxa + 1 if a.maxa >= 0 else a.maxv + 1
        kds.append(kd(name, nv, max(a.maxs + 1, 16), acc))
        print(name, "vgpr", a.maxv + 1, "agpr", a.maxa + 1, "sgpr", a.maxs + 1, "lines", len(a.lines))
    one(k1.gen_k1, "k1_kernel", prefetch_bytes_expr="TEXT_END-K1_PC")
    one(k2.gen_k2, "k2_kernel")
    one(k3.gen_k3a, "k3a_kernel")
    one(k3.gen_k3b, "k3b_kernel")
    s = HEADER
    s += f"; @launch kernel=k1_kernel grid=(256,1,1) block=(512,1,1) lds={K1_LDS}\n"
    s += f"; @launch kernel=k2_kernel grid=(513,1,1) block=(256,1,1) lds=73728\n"
    s += f"; @launch kernel=k3a_kernel grid=(256,1,1) block=(128,1,1) lds=8192\n"
    s += f"; @launch kernel=k3b_kernel grid=(256,1,1) block=(256,1,1) lds=65536\n"
    s += '.amdgcn_target "amdgcn-amd-amdhsa--gfx950"\n.text\n'
    s += "".join(parts)
    s += "TEXT_END:\n"
    s += '.section .rodata,"a"\n' + "".join(kds)
    open(path, "w").write(s)

if __name__ == "__main__":
    if "--stamp" in sys.argv:
        sys.argv.remove("--stamp"); Asm.STAMP = True
    for x in list(sys.argv):
        if x.startswith("--drop="):
            sys.argv.remove(x); Asm.DROP = tuple(x[7:].split(","))
    build(sys.argv[1] if len(sys.argv) > 1 else "parallel_sum__spectral_gfnet__dense_activation_silu__prompt.s")
```
